```python
import torch

def _softmax(x, axis=-1):
    return torch.softmax(x, dim=axis)
def _gelu(x):
    return torch.nn.functional.gelu(x, approximate="tanh")
def _silu(x):
    return torch.nn.functional.silu(x)
def _sigmoid(x):
    return torch.sigmoid(x)
def _layernorm(x, axis=-1, eps=1e-5):
    m = x.mean(dim=axis, keepdim=True)
    v = x.var(dim=axis, keepdim=True, unbiased=False)
    return (x - m) / torch.sqrt(v + eps)
def _scatter_add(tgt, idx, src, axis=0):
    return tgt.clone().index_add_(axis, idx, src)
def _segment_sum(src, seg, n):
    out = torch.zeros((n,) + src.shape[1:], dtype=src.dtype)
    return out.index_add_(0, seg, src)
def _pad(x, pw):
    flat = tuple(v for pair in reversed(pw) for v in pair)
    return torch.nn.functional.pad(x, flat)

kernel_name = 'standalone__linear_kernel_rfa__decode'

def setup_inputs():

    _w = (lambda a: (lambda t: t.to(torch.bfloat16) if t.is_floating_point() else t)(torch.as_tensor(a)))
    B, H, Sq, Sk, D, M = 4, 32, 1, 4096, 128, 8
    return {
        "q": _w((lambda *s: torch.randn(*s, dtype=torch.bfloat16) * 0.05)(B, H, Sq, D)),
        "k": _w((lambda *s: torch.randn(*s, dtype=torch.bfloat16) * 0.4)(B, H, Sk, D)),
        "v": _w((lambda *s: torch.randn(*s, dtype=torch.bfloat16) * 0.4)(B, H, Sk, D)),
        "omega": _w((lambda *s: torch.randn(*s, dtype=torch.bfloat16) * 0.8)(M, D)),
    }

def reference(q, k, v, omega):
    d = q.shape[-1]
    m = omega.shape[0]
    scale = float(d) ** -0.25
    qs = q * scale
    ks = k * scale
    q_proj = torch.einsum("bhsd,md->bhsm", qs, omega)
    k_proj = torch.einsum("bhsd,md->bhsm", ks, omega)
    q_sq = 0.5 * torch.einsum("bhsd,bhsd->bhs", qs, qs)[..., None]
    k_sq = 0.5 * torch.einsum("bhsd,bhsd->bhs", ks, ks)[..., None]
    inv_sqrt_m = float(m) ** -0.5
    phi_q = torch.exp(q_proj - q_sq) * inv_sqrt_m + 1e-6
    phi_k = torch.exp(k_proj - k_sq) * inv_sqrt_m + 1e-6
    kv = torch.einsum("bhsm,bhsd->bhmd", phi_k, v)
    z  = torch.einsum("bhsm->bhm", phi_k)
    num = torch.einsum("bhqm,bhmd->bhqd", phi_q, kv)
    den = torch.einsum("bhqm,bhm->bhq", phi_q, z)[..., None] + 1e-6
    return num / den
```

```python
import sys, struct, math, os
def f2u(x): return struct.unpack('<I', struct.pack('<f', x))[0]
HEADER = """; Kernarg layout for this problem (56 bytes, ptrs only, base s[0:1]):
"""
NAME = "standalone__linear_kernel_rfa__decode_kernel"

def gen(map="wwtttttxxxccccc", lims="55555555", flags="nt", lds=0, stamps=0, fixed=0, diag=0, tag=0):
    L = []; A = L.append
    def I(s): A("    "+s)
    NW = 4; nwg = 256
    lims = [int(c) for c in str(lims)]
    assert len(lims) == 8
    pos = {k: [12+i for i,ch in enumerate(map) if ch == k] for k in "wtxc"}
    assert len(pos['w']) == 2 and len(pos['t']) == 5 and max(pos['w']+pos['t']) < 20
    wgpos = pos['x']+pos['c']
    mem_i = [i for i,p in enumerate(wgpos) if p < 20]
    assert len(mem_i) == 1
    mem_i = mem_i[0]; mem_p = wgpos[mem_i]
    tmask = sum(1 << p for p in pos['t']) | (1 << 20)
    OML = 32768; QL = OML+2048; RED = 36864
    ldsneed = RED + NW*1024 + 64
    lds = max(lds, ldsneed)
    scale = 128**-0.25
    c1 = scale*math.log2(math.e); cneg = -0.5*scale; ism = 8**-0.5
    A(HEADER.rstrip())
    A(f"; @launch grid=({nwg},1,1) block=({NW*64},1,1) lds={lds}")
    A('.amdgcn_target "amdgcn-amd-amdhsa--gfx950"')
    A(".text"); A(f".globl {NAME}"); A(".p2align 8"); A(f".type {NAME},@function"); A(f"{NAME}:")
    VOK = [1,2,3,4]
    VOV = 5
    RA = [6,7,8,9]
    SEL = [10,11,12,13]
    CNEG, ONE, LOM = 14, 15, 36
    A0, A1, BB, DEN = 37, 38, 39, 56
    ACC, X, W, AB = 16, 20, 24, 28
    OM = 40
    N0, N1, T0, T1 = 57, 58, 59, 60
    KR = 64
    VR = 80
    nv = 96
    I("s_load_dwordx8 s[4:11], s[0:1], 0")
    I("s_load_dwordx4 s[12:15], s[0:1], 32")
    I("s_load_dwordx2 s[16:17], s[0:1], 48")
    if stamps or fixed or diag: I("s_memrealtime s[60:61]")
    I(f"s_cmp_ge_u32 s2, {nwg}")
    I("s_cbranch_scc1 L_end")
    I("v_lshrrev_b32 v61, 6, v0")
    I("v_and_b32 v62, 15, v0          ; n")
    I("v_readfirstlane_b32 s70, v61   ; wave")
    I("v_bfe_u32 v63, v0, 4, 2        ; g")
    I("s_mov_b32 s50, 0")
    for i,p in enumerate(wgpos):
        if i == mem_i: continue
        I(f"s_bfe_u32 s18, s2, {0x10000+i:#x}"); I(f"s_lshl_b32 s18, s18, {p-20}"); I("s_or_b32 s50, s50, s18")
    I(f"s_bfe_u32 s51, s2, {0x10000+mem_i:#x}      ; member")
    I(f"s_lshl_b32 s3, s51, {mem_p}")
    for i,p in enumerate(pos['w']):
        I(f"s_bfe_u32 s18, s70, {0x10000+i:#x}"); I(f"s_lshl_b32 s18, s18, {p}"); I("s_or_b32 s3, s3, s18")
    I("v_and_b32 v61, 63, v0")
    I("v_lshlrev_b32 v61, 4, v61      ; lane*16")
    I(f"v_add_u32 v{VOV}, s3, v61")
    I("v_lshlrev_b32 v60, 6, v63      ; (4g)*16")
    I(f"v_xor_b32 v{VOK[0]}, v{VOV}, v60")
    for c in range(1,4): I(f"v_xor_b32 v{VOK[c]}, {16*c}, v{VOK[0]}")
    I("s_lshl_b32 s71, s70, 13")
    I("s_lshl_b32 s19, s70, 10")
    I(f"s_add_u32 m0, s19, {OML}")
    I("s_lshl_b32 s18, s50, 20")
    I("s_lshl_b32 s55, s50, 8")
    I("s_mov_b32 s22, 0x100000"); I("s_mov_b32 s23, 0x20000"); I("s_mov_b32 s26, 0x100000"); I("s_mov_b32 s27, 0x20000")
    I("s_mov_b32 s31, 0x20000")
    I("s_movk_i32 s30, 256")
    I("s_mov_b32 s48, 0")
    I("s_waitcnt lgkmcnt(0)")
    I("s_add_u32 s20, s6, s18"); I("s_addc_u32 s21, s7, 0")
    I("s_add_u32 s24, s8, s18"); I("s_addc_u32 s25, s9, 0")
    I("s_add_u32 s4, s4, s55"); I("s_addc_u32 s5, s5, 0")
    I("s_cmp_lt_u32 s70, 2")
    I("s_cselect_b32 s28, s10, s4"); I("s_cselect_b32 s29, s11, s5"); I("s_cselect_b32 s30, 2048, s30"); I("s_cselect_b32 s19, s19, 0")
    I("buffer_load_dwordx4 v61, s[28:31], s19 offen lds")
    I("s_mov_b32 m0, s71")
    def ldK(c): I(f"buffer_load_dwordx4 v{VOK[c]}, s[20:23], s48 offen offset:{1024*c} {flags} lds")
    def ldV(r): I(f"buffer_load_dwordx4 v[{VR+4*r}:{VR+4*r+3}], v{VOV}, s[24:27], s48 offen offset:{1024*r} {flags}")
    I("s_nop 0")
    for c in range(4): ldK(c)
    for r in range(4): ldV(r)
    def adv():
        I(f"s_or_b32 s48, s48, {(~tmask) & 0xffffffff:#x}"); I("s_add_u32 s48, s48, 1"); I(f"s_and_b32 s48, s48, {tmask:#x}")
    adv()
    I("v_and_b32 v57, 3, v62"); I("v_lshlrev_b32 v57, 10, v57")
    I("v_lshrrev_b32 v58, 2, v62"); I("v_lshl_add_u32 v57, v58, 8, v57   ; kappa*256")
    I("v_xor_b32 v59, v63, v62"); I("v_lshl_add_u32 v57, v59, 4, v57")
    I(f"v_add_u32 v{RA[0]}, s71, v57")
    for c in range(1,4): I(f"v_xor_b32 v{RA[c]}, {64*c}, v{RA[0]}")
    I("v_lshlrev_b32 v58, 1, v58"); I("v_and_b32 v59, 1, v62"); I("v_add_u32 v58, v58, v59   ; m(i)")
    I("v_lshlrev_b32 v60, 4, v63      ; g*16"); I("v_lshl_add_u32 v58, v58, 8, v60")
    I(f"v_mov_b32 v{CNEG}, {f2u(cneg):#x}")
    I(f"v_mov_b32 v{ONE}, 1.0")
    I("v_cmp_gt_u32 vcc, 8, v62")
    I(f"v_mov_b32 v{LOM}, 0xffff0000")
    I(f"v_mov_b32 v57, 0x03020c0c")
    I(f"v_cndmask_b32 v{LOM}, v{LOM}, 0, vcc")
    I("v_cmp_eq_u32 vcc, 0, v59")
    I("v_mov_b32 v61, 0x0c0c0302")
    I("v_bfe_u32 v59, v62, 1, 2")
    I("v_cndmask_b32 v57, v57, v61, vcc")
    I("v_mov_b32 v61, 0x0c0c0c0c")
    for q in range(4):
        I(f"v_cmp_eq_u32 vcc, {q}, v59"); I("s_nop 1"); I(f"v_cndmask_b32 v{SEL[q]}, v61, v57, vcc")
    I(f"v_mov_b32 v{DEN}, 0")
    for r in range(4): I(f"v_mov_b32 v{ACC+r}, 0")
    I(f"s_mov_b32 s52, {f2u(c1):#x}"); I(f"s_mov_b32 s53, {f2u(ism):#x}"); I(f"s_mov_b32 s54, {f2u(1e-6):#x}")
    I("s_add_u32 s36, s12, s55"); I("s_addc_u32 s37, s13, 0"); I("s_mov_b32 s38, 256"); I("s_mov_b32 s39, 0x20000")
    I("s_mov_b32 s40, s14"); I("s_mov_b32 s41, s15"); I("s_mov_b32 s42, 256"); I("s_mov_b32 s43, 0x20000")
    I("s_lshl_b32 s55, s50, 11")
    I("s_add_u32 s44, s16, s55"); I("s_addc_u32 s45, s17, 0"); I("s_mov_b32 s46, 2048"); I("s_mov_b32 s47, 0x20000")
    I("s_waitcnt vmcnt(8)")
    I("s_barrier")
    for c in range(4): I(f"ds_read_b128 v[{OM+4*c}:{OM+4*c+3}], v58 offset:{OML+64*c}")
    for c in range(4): I(f"ds_read_b128 v[{KR+4*c}:{KR+4*c+3}], v60 offset:{QL+64*c}")
    def projA(waits):
        I(f"v_mov_b32 v{N0}, 0"); I(f"v_mov_b32 v{N1}, 0")
        for c in range(4):
            if waits: I(f"s_waitcnt lgkmcnt({3-c})")
            srcc = "0" if c == 0 else f"v[{X}:{X+3}]"
            I(f"v_mfma_f32_16x16x32_bf16 v[{X}:{X+3}], v[{OM+4*c}:{OM+4*c+3}], v[{KR+4*c}:{KR+4*c+3}], {srcc}")
            for j in range(4): I(f"v_dot2c_f32_bf16 v{N0+(j&1)}, v{KR+4*c+j}, v{KR+4*c+j}")
    def projB():
        I(f"v_add_f32 v{N0}, v{N0}, v{N1}")
        I("s_nop 1")
        I(f"v_mfma_f32_16x16x4_f32 v[{X}:{X+3}], v{CNEG}, v{N0}, v[{X}:{X+3}]")
    projA(True); I("s_nop 2"); projB()
    I("s_nop 9")
    I(f"v_mul_f32 v{A0}, s52, v{X}"); I(f"v_mul_f32 v{A1}, s52, v{X+1}")
    I(f"v_exp_f32 v{A0}, v{A0}"); I(f"v_exp_f32 v{A1}, v{A1}")
    I(f"v_mov_b32 v{T0}, s54")
    I(f"v_fma_f32 v{A0}, v{A0}, s53, v{T0}"); I(f"v_fma_f32 v{A1}, v{A1}, s53, v{T0}")
    I(f"v_add_f32 v{BB}, v{A0}, v{A1}"); I(f"v_mul_f32 v{BB}, s54, v{BB}")
    I(f"v_mul_f32 v{A0}, s53, v{A0}"); I(f"v_mul_f32 v{A1}, s53, v{A1}")
    def p_read():
        for c in range(4): I(f"ds_read_b128 v[{KR+4*c}:{KR+4*c+3}], v{RA[c]}")
        for c in range(4): I(f"v_xor_b32 v{RA[c]}, 0x1000, v{RA[c]}")
    def p_proj():
        projA(True); I("s_nop 2"); projB()
    def p_exp():
        I("s_nop 7")
        I(f"v_mul_f32 v{T0}, s52, v{X}"); I(f"v_mul_f32 v{T1}, s52, v{X+1}")
        I(f"v_exp_f32 v{T0}, v{T0}"); I(f"v_exp_f32 v{T1}, v{T1}")
        I("s_nop 0")
        I(f"v_fma_f32 v{T0}, v{A0}, v{T0}, v{BB}"); I(f"v_fma_f32 v{T0}, v{A1}, v{T1}, v{T0}")
        I(f"v_add_f32 v{DEN}, v{DEN}, v{T0}")
        I("s_nop 0")
        I(f"v_mfma_f32_16x16x4_f32 v[{W}:{W+3}], v{T0}, v{ONE}, 0")
    def p_v(r, first):
        Ab = AB+4*(r&1)
        if first: I("s_nop 7")
        I(f"v_and_b32 v{T0}, v{W+r}, v{LOM}"); I(f"v_sub_f32 v{T0}, v{W+r}, v{T0}")
        for q in range(4): I(f"v_perm_b32 v{Ab+q}, v{T0}, v{T0}, v{SEL[q]}")
        I("s_nop 1")
        I(f"v_mfma_f32_16x16x32_bf16 v[{ACC}:{ACC+3}], v[{Ab}:{Ab+3}], v[{VR+4*r}:{VR+4*r+3}], v[{ACC}:{ACC+3}]")
    done = []; cur = -99
    for j in range(8):
        cur = max(cur, 8+j-lims[j]); done.append(cur)
    ks = min(j for j in range(8) if done[j] >= 3)
    sched = {j: [] for j in range(8)}
    if ks == 0:
        sched[0].append(p_read); sched[1].append(p_proj); sched[2].append(p_exp)
    elif ks == 1:
        sched[1].append(p_read); sched[1].append(p_proj); sched[2].append(p_exp)
    elif ks == 2:
        sched[2].append(p_read); sched[2].append(p_proj); sched[2].append(lambda: I("s_nop 1")); sched[2].append(p_exp)
    else: raise Exception("lim too big")
    for r in range(4):
        assert done[3+r] >= 4+r, (done, r)
        sched[3+r].append(lambda r=r: p_v(r, r == 0))
    A("L_loop:")
    I("s_xor_b32 m0, m0, 0x1000")
    for j in range(8):
        I(f"s_waitcnt vmcnt({lims[j]-1})")
        if j < 4: ldK(j)
        else: ldV(j-4)
        for f in sched[j]: f()
    I("s_cmp_eq_u32 s48, 0x100000")
    I("s_cbranch_scc1 L_done")
    adv()
    I("s_branch L_loop")
    A("L_done:")
    if stamps: I("s_memrealtime s[62:63]")
    for sh in (8,4,2,1):
        I(f"v_add_f32 v{DEN}, v{DEN}, v{DEN} row_ror:{sh}"); I("s_nop 1")
    I(f"v_mov_b32 v{T0}, v{DEN}"); I("s_nop 1")
    I(f"v_permlane16_swap_b32 v{DEN}, v{T0}"); I("s_nop 1")
    I(f"v_add_f32 v{DEN}, v{DEN}, v{T0}"); I(f"v_mov_b32 v{T0}, v{DEN}"); I("s_nop 1")
    I(f"v_permlane32_swap_b32 v{DEN}, v{T0}"); I("s_nop 1")
    I(f"v_add_f32 v{DEN}, v{DEN}, v{T0}")
    I("v_lshlrev_b32 v20, 5, v62"); I("v_bfe_u32 v21, v0, 4, 1"); I("v_lshl_add_u32 v20, v21, 4, v20")
    I("v_lshrrev_b32 v21, 5, v0"); I("v_lshl_add_u32 v20, v21, 9, v20")
    I(f"ds_write_b128 v20, v[{ACC}:{ACC+3}] offset:{RED}")
    I("v_lshrrev_b32 v21, 6, v0"); I("v_lshlrev_b32 v21, 2, v21")
    I(f"ds_write_b32 v21, v{DEN} offset:{RED+NW*1024}")
    I("s_waitcnt lgkmcnt(0)")
    I("s_barrier")
    I("s_cmp_lg_u32 s70, 0")
    I("s_cbranch_scc1 L_end")
    I("v_lshlrev_b32 v14, 3, v0"); I("v_mov_b32 v15, 0")
    for i in range(2*NW): I(f"ds_read_b64 v[{20+2*i}:{21+2*i}], v14 offset:{RED+512*i}")
    I(f"ds_read_b128 v[40:43], v15 offset:{RED+NW*1024}")
    I("s_waitcnt lgkmcnt(0)")
    for i in range(1, 2*NW):
        I(f"v_add_f32 v20, v20, v{20+2*i}"); I(f"v_add_f32 v21, v21, v{21+2*i}")
    I("v_add_f32 v40, v40, v41"); I("v_add_f32 v42, v42, v43"); I("v_add_f32 v22, v40, v42"); I("v_mov_b32 v23, 0")
    I("s_lshl_b32 s55, s51, 10")
    I("v_lshlrev_b32 v14, 4, v0")
    I("buffer_store_dwordx4 v[20:23], v14, s[44:47], s55 offen sc0 sc1")
    I("s_and_b32 s58, s50, 3"); I("s_lshl_b32 s58, s58, 3"); I("s_lshl_b32 s59, 1, s58")
    I("s_and_b32 s56, s50, 0x7c"); I("s_add_u32 s56, s56, 128")
    I("v_mov_b32 v30, s59")
    I("s_waitcnt vmcnt(0)")
    I("s_mov_b64 exec, 1")
    I("buffer_atomic_add v30, v15, s[40:43], s56 offen sc0")
    I("s_xor_b32 s55, s55, 1024")
    I("s_waitcnt vmcnt(0)")
    I("s_mov_b64 exec, -1")
    I("v_readfirstlane_b32 s59, v30"); I("s_nop 3")
    I("s_lshr_b32 s59, s59, s58"); I("s_and_b32 s59, s59, 0xff")
    I("s_cmp_lg_u32 s59, 1")
    I("s_cbranch_scc1 L_fin")
    I("buffer_load_dwordx4 v[24:27], v14, s[44:47], s55 offen sc0 sc1")
    I("s_waitcnt vmcnt(0)")
    for j in range(3): I(f"v_add_f32 v{20+j}, v{20+j}, v{24+j}")
    I("v_add_f32 v22, s54, v22"); I("v_rcp_f32 v23, v22"); I("s_nop 0")
    I("v_fma_f32 v24, -v22, v23, 1.0"); I("v_fma_f32 v23, v24, v23, v23")
    I("v_mul_f32 v20, v20, v23"); I("v_mul_f32 v21, v21, v23")
    I("v_cvt_pk_bf16_f32 v20, v20, v21")
    I("v_lshlrev_b32 v14, 2, v0")
    I("buffer_store_dword v20, v14, s[36:39], 0 offen")
    A("L_fin:")
    if diag:
        I("s_memrealtime s[64:65]")
        I("s_not_b32 s67, s60"); I("v_mov_b32 v20, s67"); I("v_mov_b32 v21, 0")
        I("s_waitcnt lgkmcnt(0)")
        I("v_mov_b32 v22, s64")
        I("s_mov_b64 exec, 1")
        I("buffer_atomic_umax v20, v21, s[40:43], 0 offen")
        I("buffer_atomic_umax v22, v21, s[40:43], 0 offen offset:4")
        I("s_getreg_b32 s66, hwreg(HW_REG_XCC_ID, 0, 4)")
        I("s_cmp_ge_u32 s2, 8"); I("s_cbranch_scc1 L_d1")
        I("s_lshl_b32 s67, s2, 2"); I("s_lshl_b32 s66, s66, s67"); I("v_mov_b32 v22, s66")
        I("buffer_atomic_or v22, v21, s[40:43], 0 offen offset:8")
        I("v_mov_b32 v24, s6"); I("v_mov_b32 v25, s7"); I("v_mov_b32 v26, s8"); I("v_mov_b32 v27, s9")
        I("buffer_store_dwordx4 v[24:27], v21, s[40:43], 0 offen offset:16")
        I("v_mov_b32 v28, s16"); I("v_mov_b32 v29, s17"); I("v_mov_b32 v30, s12"); I("v_mov_b32 v31, s13")
        I("buffer_store_dwordx4 v[28:31], v21, s[40:43], 0 offen offset:32")
        A("L_d1:")
    if fixed:
        A("L_spin:")
        I("s_memrealtime s[68:69]"); I("s_waitcnt lgkmcnt(0)"); I("s_sub_u32 s68, s68, s60")
        I(f"s_cmp_lt_u32 s68, {fixed*100}"); I("s_cbranch_scc1 L_spin")
    if stamps:
        I("s_memrealtime s[64:65]")
        I("s_getreg_b32 s66, hwreg(HW_REG_XCC_ID)"); I("s_getreg_b32 s67, hwreg(HW_REG_HW_ID)")
        I("s_waitcnt lgkmcnt(0)")
        I("s_mov_b32 s61, 0"); I("s_sub_u32 s63, s64, s62")
        for j in range(8): I(f"v_mov_b32 v{20+j}, s{60+j}")
        I("s_add_u32 s44, s16, 0x100000"); I("s_addc_u32 s45, s17, 0"); I("s_mov_b32 s46, 0x100000")
        I("s_lshl_b32 s55, s2, 5"); I("v_mov_b32 v14, 0"); I("s_mov_b64 exec, 1")
        I("buffer_store_dwordx4 v[20:23], v14, s[44:47], s55 offen")
        I("buffer_store_dwordx4 v[24:27], v14, s[44:47], s55 offen offset:16")
    A("L_end:")
    I("s_endpgm")
    A('.section .rodata,"a"'); A(".p2align 6"); A(f".amdhsa_kernel {NAME}")
    A(f"  .amdhsa_next_free_vgpr {nv}"); A("  .amdhsa_next_free_sgpr 80"); A(f"  .amdhsa_accum_offset {(nv+3)//4*4}")
    A("  .amdhsa_group_segment_fixed_size 0"); A("  .amdhsa_kernarg_size 56"); A("  .amdhsa_user_sgpr_count 2")
    A("  .amdhsa_user_sgpr_kernarg_segment_ptr 1"); A("  .amdhsa_system_sgpr_workgroup_id_x 1")
    A("  .amdhsa_float_denorm_mode_32 3")
    A(".end_amdhsa_kernel")
    return "\n".join(L)+"\n"

if __name__ == "__main__":
    d = sys.argv[1]
    os.makedirs(d, exist_ok=True)
    for spec in sys.argv[2:]:
        kv = {}
        parts = spec.split(",")
        kv['map'] = parts[0]
        for t in parts[1:]:
            k, v = t.split("=")
            kv[k] = v if k == 'lims' else (int(v, 0) if v[0].isdigit() else v.replace("+", " "))
        name = spec.replace("=", "").replace(",", "_")
        open(f"{d}/{name}.s", "w").write(gen(**kv))
```

```python
import sys, struct, math, os
def f2u(x): return struct.unpack('<I', struct.pack('<f', x))[0]
HEADER = """; Kernarg layout for this problem (56 bytes, ptrs only, base s[0:1]):
"""
NAME = "standalone__linear_kernel_rfa__decode_kernel"

def gen(map="wwtcttttxxxcccc", klims="5555", vlims="5555", flags="nt", lds=0, stamps=0, fixed=0, tl=0, tag=0, oflags="", par=0,
        ib=8, slp=3, np=0, ts=0, sf='sc0 sc1', qf='', agg=8, lv='0.0.0.0.2.4.6.8', l0=0, cps='12.28.40.50.57', slots='13', fchk=1):
    L = []; A = L.append
    slots = [int(c) for c in str(slots)]; ns = len(slots)
    def pattern(level):
        order = []
        for sidx in range(ns-1, -1, -1):
            for it in (0, 2, 1, 3): order.append(4*it+sidx)
        return sum(1 << order[k] for k in range(level))
    pats = [pattern(int(x)) for x in str(lv).split('.')]
    cpl = [int(x) for x in str(cps).split('.')]
    assert len(cpl) <= 8 and len(pats) == 8
    CB = 0x20000
    def I(s): A("    "+s)
    NW = 4; nwg = 256
    klims = [int(c) for c in str(klims)]; vlims = [int(c) for c in str(vlims)]
    pos = {k: [12+i for i,ch in enumerate(map) if ch == k] for k in "wtxc"}
    assert len(pos['w']) == 2 and len(pos['t']) == 5 and max(pos['w']+pos['t']) < 20
    wgpos = pos['x']+pos['c']
    mem_i = [i for i,p in enumerate(wgpos) if p < 20]
    assert len(mem_i) == 1
    mem_i = mem_i[0]; mem_p = wgpos[mem_i]
    assert map[8:] == 'xxxcccc' and mem_i == 3
    tmask = sum(1 << p for p in pos['t']) | (1 << 20)
    t1 = 1 << pos['t'][0]
    PL = 65536; OML = PL+8192; QL = OML+2048; DL = QL+2048
    CL = DL+32
    lds = max(lds, DL+64)
    scale = 128**-0.25
    c1 = scale*math.log2(math.e); cneg = -0.5*scale; ism = 8**-0.5
    A(HEADER.rstrip())
    A(f"; @launch grid=({nwg},1,1) block=({NW*64+64},1,1) lds={lds}")
    A('.amdgcn_target "amdgcn-amd-amdhsa--gfx950"')
    A(".text"); A(f".globl {NAME}"); A(".p2align 8"); A(f".type {NAME},@function"); A(f"{NAME}:")
    VO = [1,2,3,4]
    VOL = 5
    RA = [6,7,8,9]
    SEL = [10,11,12,13]
    CNEG, ONE = 14, 15
    ACC, X, W = 16, 20, 24
    RB, PA, A0, A1, BB, DEN, N0, N1, T0, T1, PAT, L16 = 28, 29, 30, 31, 32, 33, 34, 35, 36, 37, 38, 39
    OM = 40
    KR = 56
    CA, PRG, VOLP = 72, 73, 74
    TLV, TLL = 75, 76
    nv = 77 if tl else 75
    I("s_load_dwordx8 s[4:11], s[0:1], 0")
    I("s_load_dwordx4 s[12:15], s[0:1], 32")
    I("s_load_dwordx2 s[16:17], s[0:1], 48")
    if stamps or fixed: I("s_memrealtime s[60:61]")
    I(f"s_cmp_ge_u32 s2, {nwg}")
    I("s_cbranch_scc1 L_end")
    I("v_subrev_u32 v0, 64, v0")
    I("v_ashrrev_i32 v20, 6, v0")
    I("v_and_b32 v21, 15, v0          ; n")
    I("v_readfirstlane_b32 s70, v20")
    I("v_bfe_u32 v22, v0, 4, 2        ; g")
    if map[8:] == "xxxcccc" and mem_i == 3:
        I("s_and_b32 s50, s2, 7"); I("s_lshr_b32 s18, s2, 4"); I("s_lshl3_add_u32 s50, s18, s50   ; head")
    else:
        I("s_mov_b32 s50, 0")
        for i,p in enumerate(wgpos):
            if i == mem_i: continue
            I(f"s_bfe_u32 s18, s2, {0x10000+i:#x}"); I(f"s_lshl_b32 s18, s18, {p-20}"); I("s_or_b32 s50, s50, s18")
    I(f"s_bfe_u32 s51, s2, {0x10000+mem_i:#x}      ; member")
    I(f"v_and_b32 v{L16}, 63, v0")
    I(f"v_lshlrev_b32 v{L16}, 4, v{L16}      ; lane*16")
    I("s_cmp_ge_i32 s70, 0")
    I("s_cbranch_scc1 L_stream")
    I("s_lshl_b32 s18, s50, 10")
    I(f"s_mov_b32 s46, {1024+(agg-1)*8192}"); I("s_mov_b32 s47, 0x20000")
    for r in range(4): I(f"v_mov_b32 v{W+r}, -1")
    I(f"s_and_b32 s19, s2, {8 | ((agg-1) << 4)}   ; 0: this workgroup initialises {agg} slots")
    I("s_waitcnt lgkmcnt(0)")
    I("s_cbranch_scc1 L_h0")
    I("s_add_u32 s44, s16, s18"); I("s_addc_u32 s45, s17, 0")
    if not (np & 1):
        for j in range(agg):
            if j: I(f"s_mov_b32 s18, {8192*j}")
            I(f"buffer_store_dwordx4 v[{W}:{W+3}], v{L16}, s[44:47], {'s18' if j else '0'} offen {sf}")
    A("L_h0:")
    I("s_branch L_helper")
    A("L_stream:")
    I(f"s_lshl_b32 s3, s51, {mem_p}")
    if pos['w'] == [12,13]:
        I("s_lshl_b32 s18, s70, 12"); I("s_or_b32 s3, s3, s18")
    else:
        for i,p in enumerate(pos['w']):
            I(f"s_bfe_u32 s18, s70, {0x10000+i:#x}"); I(f"s_lshl_b32 s18, s18, {p}"); I("s_or_b32 s3, s3, s18")
    I(f"v_add_u32 v{VOL}, s3, v{L16}")
    I("v_lshlrev_b32 v23, 6, v22      ; (4g)*16")
    I(f"v_xor_b32 v{VO[0]}, v{VOL}, v23")
    for c in range(1,4): I(f"v_xor_b32 v{VO[c]}, {16*c}, v{VO[0]}")
    I("s_lshl_b32 s71, s70, 14")
    I("s_lshl_b32 s19, s70, 10")
    I(f"s_add_u32 m0, s19, {OML}")
    I("s_mov_b32 s31, 0x20000"); I("s_movk_i32 s30, 256")
    I("s_lshl_b32 s18, s50, 20")
    I("s_lshl_b32 s55, s50, 8")
    I("s_mov_b32 s22, 0x100000"); I("s_mov_b32 s23, 0x20000")
    I(f"s_mov_b32 s48, {t1:#x}")
    I("s_waitcnt lgkmcnt(0)")
    I("s_add_u32 s4, s4, s55"); I("s_addc_u32 s5, s5, 0")
    I("s_cmp_lt_u32 s70, 2")
    I("s_cselect_b32 s28, s10, s4"); I("s_cselect_b32 s29, s11, s5"); I("s_cselect_b32 s30, 2048, s30"); I("s_cselect_b32 s19, s19, 0")
    I(f"buffer_load_dwordx4 v{L16}, s[28:31], s19 offen {qf} lds")
    I("s_mov_b32 m0, s71")
    I("s_add_u32 s20, s6, s18"); I("s_addc_u32 s21, s7, 0")
    def ld(c, so="s48"): I(f"buffer_load_dwordx4 v{VO[c]}, s[20:23], {so} offen offset:{1024*c} {flags} lds")
    for c in range(4): ld(c, "0")
    I("s_or_b32 m0, s71, 0x1000")
    I("s_movk_i32 s73, 0x1000")
    for c in range(ib-4): ld(c)
    I("s_add_u32 s24, s8, s18"); I("s_addc_u32 s25, s9, 0")
    I("s_lshl_b32 s56, s50, 10")
    I("s_add_u32 s44, s16, s56"); I("s_addc_u32 s45, s17, 0"); I("s_movk_i32 s46, 1024"); I("s_mov_b32 s47, 0x20000")
    I("v_and_b32 v16, 3, v21"); I("v_lshlrev_b32 v16, 10, v16")
    I("v_lshrrev_b32 v17, 2, v21"); I("v_lshl_add_u32 v16, v17, 8, v16   ; kappa*256")
    I("v_xor_b32 v18, v22, v21"); I(f"v_lshl_add_u32 v{RB}, v18, 4, v16")
    I("v_lshlrev_b32 v17, 1, v17"); I("v_and_b32 v18, 1, v21"); I("v_add_u32 v17, v17, v18   ; m(i)")
    I(f"s_mov_b32 s58, {OML}")
    I(f"v_lshl_add_u32 v{RA[1]}, v22, 4, s58   ; g*16 + OML"); I(f"v_lshl_add_u32 v{RA[0]}, v17, 8, v{RA[1]}")
    I("s_lshl_b32 s59, s70, 11"); I(f"s_add_u32 s59, s59, {PL}")
    I(f"v_lshl_add_u32 v{PA}, v21, 2, s59")
    I("v_cmp_gt_u32 vcc, 8, v21")
    I("v_mov_b32 v16, 0x0100"); I("v_mov_b32 v17, 0x0302")
    I("v_cndmask_b32 v16, v16, v17, vcc")
    I("v_cmp_eq_u32 vcc, 0, v18")
    I("v_or_b32 v17, 0x0c0c0000, v16")
    I("v_lshlrev_b32 v16, 16, v16"); I("v_or_b32 v16, 0x0c0c, v16")
    I("v_cndmask_b32 v16, v16, v17, vcc")
    I("v_bfe_u32 v18, v21, 1, 2")
    I("v_mov_b32 v17, 0x0c0c0c0c")
    for q in range(4):
        I(f"v_cmp_eq_u32 vcc, {q}, v18"); I("s_nop 1"); I(f"v_cndmask_b32 v{SEL[q]}, v17, v16, vcc")
    I(f"v_mov_b32 v{CNEG}, {f2u(cneg):#x}")
    I(f"v_mov_b32 v{ONE}, 1.0")
    I(f"v_mov_b32 v{DEN}, 0")
    for r in range(4): I(f"v_mov_b32 v{ACC+r}, 0")
    I(f"s_mov_b32 s52, {f2u(c1):#x}"); I(f"s_mov_b32 s53, {f2u(ism):#x}"); I(f"s_mov_b32 s54, {f2u(1e-6):#x}")
    I("s_mov_b32 s74, 0x07060302")
    I("s_add_u32 s36, s12, s55"); I("s_addc_u32 s37, s13, 0"); I("s_movk_i32 s38, 256"); I("s_mov_b32 s39, 0x20000")
    if tl:
        I(f"v_and_b32 v{TLL}, 63, v0"); I(f"v_mov_b32 v{TLV}, 0"); I("s_mov_b32 s78, 0")
    I(f"v_mov_b32 v{PAT}, {pattern(l0):#x}"); I(f"v_mov_b32 v{PRG}, 1")
    I("s_lshl_b32 s18, s70, 2"); I(f"s_add_u32 s18, s18, {CL+16}"); I(f"v_mov_b32 v{CA}, {CL}"); I(f"v_mov_b32 v{VOLP}, s18")
    I(f"s_waitcnt vmcnt({ib})")
    I("s_barrier")
    for c in range(4): I(f"ds_read_b128 v[{OM+4*c}:{OM+4*c+3}], v{RA[0]} offset:{64*c}")
    for c in range(4): I(f"ds_read_b128 v[{KR+4*c}:{KR+4*c+3}], v{RA[1]} offset:{2048+64*c}")
    def proj():
        I(f"v_mov_b32 v{N0}, 0"); I(f"v_mov_b32 v{N1}, 0")
        for c in range(4):
            I(f"s_waitcnt lgkmcnt({3-c})")
            srcc = "0" if c == 0 else f"v[{X}:{X+3}]"
            I(f"v_mfma_f32_16x16x32_bf16 v[{X}:{X+3}], v[{OM+4*c}:{OM+4*c+3}], v[{KR+4*c}:{KR+4*c+3}], {srcc}")
            for j in range(4): I(f"v_dot2c_f32_bf16 v{N0+(j&1)}, v{KR+4*c+j}, v{KR+4*c+j}")
        I("s_nop 2")
        I(f"v_add_f32 v{N0}, v{N0}, v{N1}")
        I("s_nop 1")
        I(f"v_mfma_f32_16x16x4_f32 v[{X}:{X+3}], v{CNEG}, v{N0}, v[{X}:{X+3}]")
    proj()
    I("s_nop 9")
    I(f"v_mul_f32 v{A0}, s52, v{X}"); I(f"v_mul_f32 v{A1}, s52, v{X+1}")
    I(f"v_exp_f32 v{A0}, v{A0}"); I(f"v_exp_f32 v{A1}, v{A1}")
    I(f"v_mov_b32 v{T0}, s54")
    I(f"v_fma_f32 v{A0}, v{A0}, s53, v{T0}"); I(f"v_fma_f32 v{A1}, v{A1}, s53, v{T0}")
    I(f"v_add_f32 v{BB}, v{A0}, v{A1}"); I(f"v_mul_f32 v{BB}, s54, v{BB}")
    I(f"v_mul_f32 v{A0}, s53, v{A0}"); I(f"v_mul_f32 v{A1}, s53, v{A1}")
    for c in range(ib-4, 4):
        I("s_waitcnt vmcnt(4)"); ld(c)
    nlab = [0]
    def wait(lims, j):
        if j in slots:
            nlab[0] += 1
            I(f"s_bitcmp1_b32 s80, {slots.index(j)}")
            I(f"s_cbranch_scc1 L_p{nlab[0]}")
            I(f"s_waitcnt vmcnt({lims[j]-1})"); A(f"L_p{nlab[0]}:")
            I(f"s_waitcnt vmcnt({lims[j]})")
        else: I(f"s_waitcnt vmcnt({lims[j]-1})")
    def top():
        if tl: I("s_memrealtime s[76:77]")
        I(f"v_readfirstlane_b32 s80, v{PAT}")
        I(f"v_add_u32 v{PRG}, 1, v{PRG}")
        I(f"ds_read_b32 v{PAT}, v{CA}")
        I(f"ds_write_b32 v{VOLP}, v{PRG}")
        I(f"s_or_b32 s48, s48, {(~tmask) & 0xffffffff:#x}"); I("s_add_u32 s48, s48, 1"); I(f"s_and_b32 s48, s48, {tmask:#x}")
        I("s_add_u32 s73, s73, 0x1000"); I("s_and_b32 s73, s73, 0x3000"); I("s_or_b32 m0, s71, s73"); I("s_xor_b32 s72, m0, 0x2000")
        I("s_lshr_b32 s81, s73, 10"); I("s_lshr_b32 s80, s80, s81")
        if tl:
            I("s_waitcnt lgkmcnt(0)"); I("s_sub_u32 s76, s76, s60"); I(f"v_mov_b32 v{T1}, s76"); I(f"v_cmp_eq_u32 vcc, s78, v{TLL}"); I("s_add_u32 s78, s78, 1"); I("s_nop 0")
            I(f"v_cndmask_b32 v{TLV}, v{TLV}, v{T1}, vcc")
    def kslot(lims):
        done = []; cur = -99
        for j in range(4):
            cur = max(cur, 8+j-lims[j]-(1 if j in slots else 0)); done.append(cur)
        return min(j for j in range(4) if done[j] >= 3)
    def k_addr():
        I(f"v_add_u32 v{RA[0]}, s72, v{RB}")
        for c in range(1,4): I(f"v_xor_b32 v{RA[c]}, {64*c}, v{RA[0]}")
    def k_read():
        for c in range(4): I(f"ds_read_b128 v[{KR+4*c}:{KR+4*c+3}], v{RA[c]}")
    def k_exp():
        I("s_nop 7")
        I(f"v_mul_f32 v{T0}, s52, v{X}"); I(f"v_mul_f32 v{T1}, s52, v{X+1}")
        I(f"v_exp_f32 v{T0}, v{T0}"); I(f"v_exp_f32 v{T1}, v{T1}")
        I("s_nop 0")
        I(f"v_fma_f32 v{T0}, v{A0}, v{T0}, v{BB}"); I(f"v_fma_f32 v{T0}, v{A1}, v{T1}, v{T0}")
        I(f"v_add_f32 v{DEN}, v{DEN}, v{T0}")
        I("s_nop 0")
        I(f"v_mfma_f32_16x16x4_f32 v[{W}:{W+3}], v{ONE}, v{T0}, 0")
    def k_pack():
        I("s_nop 7")
        I(f"v_and_b32 v{T0}, 0xffff0000, v{W}"); I(f"v_sub_f32 v{T0}, v{W}, v{T0}")
        I(f"v_perm_b32 v{T0}, v{W}, v{T0}, s74")
        I("s_mov_b64 exec, 0xffff")
        I(f"ds_write_b32 v{PA}, v{T0}")
        I("s_mov_b64 exec, -1")
        I(f"v_add_u32 v{PA}, 64, v{PA}")
    ks = kslot(klims)
    sched = {0: [k_read], 1: [proj], 2: [k_exp], 3: [k_pack]} if ks == 0 else {0: [], 1: [k_read, proj], 2: [k_exp], 3: [k_pack]}
    assert ks <= 1
    A("L_kloop:")
    top()
    I("s_cmp_lg_u32 s48, 0x100000")
    I("s_cbranch_scc1 L_kgo")
    I("s_mov_b32 s48, 0"); I("s_mov_b32 s20, s24"); I("s_mov_b32 s21, s25")
    for c in range(4): I(f"v_mov_b32 v{VO[c]}, v{VOL}")
    A("L_kgo:")
    k_addr()
    for j in range(4):
        wait(klims, j); ld(j)
        for f in sched[j]: f()
    I(f"s_cmp_lg_u32 s48, {t1:#x}")
    I("s_cbranch_scc1 L_kloop")
    def p_read():
        I(f"ds_read_b128 v[{W}:{W+3}], v{PA}")
        I(f"v_add_u32 v{PA}, 64, v{PA}")
    def perms(rs, w=True):
        if w: I("s_waitcnt lgkmcnt(0)")
        for r in rs:
            for q in range(4): I(f"v_perm_b32 v{OM+4*r+q}, v{W+r}, v{W+r}, v{SEL[q]}")
    I(f"v_bfe_u32 v{T0}, v0, 4, 2")
    I(f"v_lshl_add_u32 v{PA}, v{T0}, 4, s59")
    p_read()
    for sh in (8,4,2,1):
        I(f"v_add_f32 v{DEN}, v{DEN}, v{DEN} row_ror:{sh}"); I("s_nop 1")
    I(f"v_mfma_f32_16x16x4_f32 v[{X}:{X+3}], v{ONE}, v{DEN}, 0")
    perms(range(4))
    I("s_lshl_b32 s18, s70, 2"); I(f"s_add_u32 s18, s18, {DL}"); I(f"v_mov_b32 v{T0}, s18")
    I("s_mov_b64 exec, 1")
    I(f"ds_write_b32 v{T0}, v{X}")
    I("s_mov_b64 exec, -1")
    I(f"v_and_b32 v{T0}, 15, v0"); I(f"v_lshl_add_u32 v{RA[1]}, v{T0}, 5, s59"); I(f"v_bfe_u32 v{T0}, v0, 4, 1"); I(f"v_lshl_add_u32 v{RA[1]}, v{T0}, 4, v{RA[1]}")
    I(f"v_bfe_u32 v{T0}, v0, 5, 1"); I(f"v_lshl_add_u32 v{RA[1]}, v{T0}, 9, v{RA[1]}")
    I(f"s_mov_b32 s18, {PL}"); I(f"v_lshl_add_u32 v{RA[2]}, v0, 2, s18"); I(f"v_mov_b32 v{RA[3]}, {DL}")
    I(f"v_lshlrev_b32 v{A0}, 3, v0"); I(f"v_lshlrev_b32 v{A1}, 1, v0")
    vs = kslot(vlims)
    assert vs <= 1
    def v_mm():
        for r in range(4): I(f"ds_read_b128 v[{KR+4*r}:{KR+4*r+3}], v{RA[0]} offset:{1024*r}")
        for r in range(4):
            I(f"s_waitcnt lgkmcnt({3-r})")
            I(f"v_mfma_f32_16x16x32_bf16 v[{ACC}:{ACC+3}], v[{OM+4*r}:{OM+4*r+3}], v[{KR+4*r}:{KR+4*r+3}], v[{ACC}:{ACC+3}]")
        I(f"s_cmp_eq_u32 s48, {0x100000+t1:#x}")
        I("s_cbranch_scc1 L_done")
    if vs == 0: sched = {0: [v_mm], 1: [p_read], 2: [lambda: perms([0,1])], 3: [lambda: perms([2,3], False)]}
    else: sched = {0: [], 1: [v_mm, p_read], 2: [lambda: perms([0,1])], 3: [lambda: perms([2,3], False)]}
    A("L_vloop:")
    top()
    I(f"v_add_u32 v{RA[0]}, s72, v{L16}")
    for j in range(4):
        wait(vlims, j); ld(j)
        for f in sched[j]: f()
    I("s_branch L_vloop")
    A("L_done:")
    if stamps: I("s_memrealtime s[62:63]")
    if ts: I("s_memtime s[88:89]")
    I("s_nop 4")
    I("s_cmp_ge_u32 s70, 2")
    I(f"ds_write_b128 v{RA[1]}, v[{ACC}:{ACC+3}]")
    I("s_waitcnt lgkmcnt(0)")
    I("s_barrier")
    I("s_cbranch_scc1 L_end")
    if ts: I("s_memtime s[90:91]")
    for w in range(4): I(f"ds_read2st64_b32 v[{40+2*w}:{41+2*w}], v{RA[2]} offset0:{8*w} offset1:{8*w+2}")
    I(f"ds_read_b128 v[48:51], v{RA[3]}")
    I("s_waitcnt lgkmcnt(0)")
    I("v_pk_add_f32 v[40:41], v[40:41], v[42:43]"); I("v_pk_add_f32 v[44:45], v[44:45], v[46:47]")
    I("v_pk_add_f32 v[48:49], v[48:49], v[50:51]"); I("v_pk_add_f32 v[40:41], v[40:41], v[44:45]")
    I("v_add_f32 v43, v48, v49"); I("v_add_f32 v42, v40, v41")
    I("v_and_b32 v41, 0x7fffffff, v43"); I("v_mov_b32 v40, v42")
    if ts: I("s_memtime s[92:93]")
    I(f"buffer_atomic_swap_x2 v[40:41], v{A0}, s[44:47], 0 offen sc0")
    I("s_waitcnt vmcnt(0)")
    if ts: I("s_memtime s[94:95]")
    I("v_cmp_le_i32 vcc, 0, v41")
    I("s_and_saveexec_b64 s[56:57], vcc")
    I("s_cbranch_execz L_fin")
    I("v_add_f32 v43, v43, v41"); I("v_add_f32 v43, s54, v43"); I("v_rcp_f32 v44, v43"); I("v_add_f32 v42, v42, v40")
    I("v_fma_f32 v45, -v43, v44, 1.0"); I("v_fma_f32 v44, v45, v44, v44")
    I("v_mul_f32 v42, v42, v44")
    I("v_cvt_pk_bf16_f32 v42, v42, v42")
    I(f"buffer_store_short v42, v{A1}, s[36:39], 0 offen {oflags}")
    A("L_fin:")
    if fixed or stamps:
        I("s_mov_b64 exec, -1")
        I("s_cmp_lg_u32 s70, 0"); I("s_cbranch_scc1 L_end")
    if fixed:
        A("L_spin:")
        I("s_memrealtime s[68:69]"); I("s_waitcnt lgkmcnt(0)"); I("s_sub_u32 s68, s68, s60")
        I(f"s_cmp_lt_u32 s68, {fixed*100}"); I("s_cbranch_scc1 L_spin")
    if stamps:
        if ts:
            I("s_waitcnt vmcnt(0)"); I("s_memtime s[96:97]")
        I("s_memrealtime s[64:65]")
        I("s_getreg_b32 s66, hwreg(HW_REG_XCC_ID)"); I("s_getreg_b32 s67, hwreg(HW_REG_HW_ID)")
        I("s_waitcnt lgkmcnt(0)")
        I("s_mov_b32 s61, 0"); I("s_sub_u32 s63, s64, s62")
        if ts:
            I("s_sub_u32 s96, s96, s94"); I("s_sub_u32 s94, s94, s92"); I("s_sub_u32 s92, s92, s90"); I("s_sub_u32 s90, s90, s88")
            I("s_pack_ll_b32_b16 s61, s90, s92"); I("s_pack_ll_b32_b16 s65, s94, s96")
        for j in range(8): I(f"v_mov_b32 v{20+j}, s{60+j}")
        I("s_add_u32 s44, s16, 0x100000"); I("s_addc_u32 s45, s17, 0"); I("s_mov_b32 s46, 0x100000")
        if tl:
            I("s_lshl_b32 s55, s2, 8"); I("s_add_u32 s55, s55, 0x80000"); I(f"v_lshlrev_b32 v{TLL}, 2, v{TLL}")
            I(f"buffer_store_dword v{TLV}, v{TLL}, s[44:47], s55 offen")
        I("s_lshl_b32 s55, s2, 5"); I("v_mov_b32 v14, 0"); I("s_mov_b64 exec, 1")
        I("buffer_store_dwordx4 v[20:23], v14, s[44:47], s55 offen")
        I("buffer_store_dwordx4 v[24:27], v14, s[44:47], s55 offen offset:16")
    A("L_end:")
    I("s_endpgm")
    A("L_helper:")
    I(f"v_mov_b32 v1, {CL}"); I(f"v_mov_b32 v2, {pattern(l0):#x}")
    for r in range(4): I(f"v_mov_b32 v{4+r}, 0")
    I("ds_write_b32 v1, v2"); I("ds_write_b128 v1, v[4:7] offset:16")
    I(f"s_add_u32 s16, s16, {CB:#x}"); I("s_addc_u32 s17, s17, 0")
    I("s_waitcnt lgkmcnt(0)")
    I("s_barrier")
    I(f"s_cmp_ge_u32 s2, {8*len(cpl)}")
    I("s_cbranch_scc1 L_h1")
    I("s_lshl_b32 s18, s2, 8"); I("s_mov_b32 s20, 0")
    I("s_atomic_swap s20, s[16:17], s18")
    A("L_h1:")
    I(f"s_andn2_b32 s56, s50, {(agg-1)*8}")
    I("s_lshl_b32 s57, 1, s56"); I("s_lshr_b32 s56, s56, 5"); I("s_lshl_b32 s56, s56, 6")
    I("s_cmp_lg_u32 s19, 0")
    I("s_cbranch_scc1 L_h2")
    I("s_waitcnt vmcnt(0)")
    I("s_atomic_or s57, s[14:15], s56")
    A("L_h2:")
    I("s_bfe_u32 s52, s2, 0x30003"); I("s_lshl_b32 s52, s52, 8")
    for i in range(4): I(f"s_mov_b32 s{80+i}, {pats[2*i] | (pats[2*i+1] << 16):#x}")
    c = cpl + [0]*(8-len(cpl))
    I(f"s_mov_b32 s84, {sum((4*x) << (8*i) for i,x in enumerate(c[0:4])):#x}"); I(f"s_mov_b32 s85, {sum((4*x) << (8*i) for i,x in enumerate(c[4:8])):#x}")
    A("L_hl:")
    I("s_and_b32 s53, s84, 0xff")
    I("s_cbranch_scc0 L_hf")
    I("s_lshr_b64 s[84:85], s[84:85], 8")
    A("L_hp:")
    I(f"s_sleep {slp}"); I("ds_read_b128 v[4:7], v1 offset:16"); I("s_waitcnt lgkmcnt(0)")
    I("v_add_u32 v4, v4, v5"); I("v_add3_u32 v4, v4, v6, v7"); I("s_nop 0"); I("v_readfirstlane_b32 s55, v4"); I("s_nop 1")
    I("s_cmp_lt_u32 s55, s53"); I("s_cbranch_scc1 L_hp")
    I("s_mov_b32 s55, 1"); I("s_atomic_add s55, s[16:17], s52 glc")
    I("s_add_u32 s52, s52, 2048")
    I("s_waitcnt lgkmcnt(0)")
    I("s_bitcmp1_b32 s55, 4"); I("s_cselect_b64 s[58:59], s[82:83], s[80:81]")
    I("s_and_b32 s55, s55, 12"); I("s_lshl_b32 s55, s55, 2"); I("s_lshr_b64 s[58:59], s[58:59], s55")
    I("v_mov_b32 v2, s58"); I("ds_write_b32 v1, v2")
    I("s_branch L_hl")
    A("L_hf:")
    if fchk:
        I("s_load_dword s20, s[14:15], s56")
        A("L_hf1:")
        I("s_waitcnt lgkmcnt(0)")
        I("s_and_b32 s20, s20, s57")
        I("s_cbranch_scc1 L_hx")
        I("s_sleep 16")
        I("s_atomic_or s20, s[14:15], s56 glc")
        I("s_branch L_hf1")
    A("L_hx:")
    I("s_endpgm")
    A('.section .rodata,"a"'); A(".p2align 6"); A(f".amdhsa_kernel {NAME}")
    A(f"  .amdhsa_next_free_vgpr {nv}"); A("  .amdhsa_next_free_sgpr 100"); A(f"  .amdhsa_accum_offset {(nv+3)//4*4}")
    A("  .amdhsa_group_segment_fixed_size 0"); A("  .amdhsa_kernarg_size 56"); A("  .amdhsa_user_sgpr_count 2")
    A("  .amdhsa_user_sgpr_kernarg_segment_ptr 1"); A("  .amdhsa_system_sgpr_workgroup_id_x 1")
    A("  .amdhsa_float_denorm_mode_32 3")
    A(".end_amdhsa_kernel")
    return "\n".join(L)+"\n"

if __name__ == "__main__":
    d = sys.argv[1]
    os.makedirs(d, exist_ok=True)
    for spec in sys.argv[2:]:
        kv = {}
        parts = spec.split(",")
        kv['map'] = parts[0]
        for t in parts[1:]:
            k, v = t.split("=")
            kv[k] = v if k in ('klims','vlims','lv','cps','slots') else (int(v, 0) if v[0].isdigit() else v.replace("+", " "))
        name = spec.replace("=", "").replace(",", "_")
        open(f"{d}/{name}.s", "w").write(gen(**kv))
```

```python
import sys, struct, math, os
def f2u(x): return struct.unpack('<I', struct.pack('<f', x))[0]
HEADER = """; Kernarg layout for this problem (56 bytes, ptrs only, base s[0:1]):
"""
NAME = "standalone__linear_kernel_rfa__decode_kernel"

def isize(line):
    t = line.split(';')[0].strip()
    if not t or t.endswith(':') or t.startswith('.'): return 0
    import re
    op = t.split()[0]
    if op.startswith(('buffer_','ds_','v_mfma','v_perm','v_fma','v_pk_','v_lshl_add','v_bfe','v_add3','v_mad','v_cvt_pk','s_load','s_atomic','s_mem')): return 8
    if 'row_ror' in t: return 8
    lits = re.findall(r'(?<![\w\[:])(0x[0-9a-fA-F]+|\d+)(?![\w\]:(])', t.split(None,1)[1] if ' ' in t else '')
    if op.startswith(('s_nop','s_waitcnt','s_sleep','s_movk','s_cbranch','s_branch','s_setprio')): return 4
    for x in lits:
        if int(x, 0) > 64: return 8
    return 4
def add_hops(L):
    out = []; on = False; n = 0; acc = 0
    for i, line in enumerate(L):
        if line.startswith('L_switch:'):
            out.append(line); on = True; acc = 99; continue
        if on and line.startswith('L_fin:'):
            on = False
            out.append("    s_branch L_fin")
            out.append(f"L_hop{n}:"); out.append("    s_branch L_hopend")
        if on:
            sz = isize(line)
            if sz and (acc + sz > 56 or ('saveexec' in line and acc + sz + 4 > 56)) and 'saveexec' not in L[i-1]:
                out.append(f"L_hop{n}:"); out.append(f"    s_cbranch_execz L_hop{n+1}"); n += 1; acc = 0
            acc += sz
        out.append(line)
    return out

def gen(map="wwtcttttxxxcccc", klims="5555", vlims="5555", flags="nt", lds=0, stamps=0, fixed=0, tl=0, tag=0, oflags="", par=0,
        ib=8, slp=3, np=0, ts=0, sf='sc0 sc1', qf='', agg=8, lv='000011223345689f', l0=0, cps='8.18.27.36.44.52.58', so='312', fchk=1, neg=0, eb=0, el=12, pst=0, prio=3, wv=0, wr=0, sb=0, tw=0, kf=0, cw=0, hop=0, iw=2, io=2, enc=-1, em='s', eo=0):
    L = []; A = L.append
    so = [int(c) for c in str(so)]
    slots = so
    lv = str(lv); lv = "".join(ch*(32//len(lv)) for ch in lv)
    lvn = [int(ch, 16) for ch in lv]; assert len(lvn) == 32
    def pattern(l): return l
    cpl = [int(x) for x in str(cps).split('.')]
    assert len(cpl) <= 12
    CB = 0x20000
    def I(s): A("    "+s)
    NW = 4; nwg = 256
    klims = [int(c) for c in str(klims)]; vlims = [int(c) for c in str(vlims)]
    pos = {k: [12+i for i,ch in enumerate(map) if ch == k] for k in "wtxc"}
    assert len(pos['w']) == 2 and len(pos['t']) == 5 and max(pos['w']+pos['t']) < 20
    wgpos = pos['x']+pos['c']
    mem_i = [i for i,p in enumerate(wgpos) if p < 20]
    assert len(mem_i) == 1
    mem_i = mem_i[0]; mem_p = wgpos[mem_i]
    assert map[8:] == 'xxxcccc' and mem_i == 3
    tmask = sum(1 << p for p in pos['t']) | (1 << 20)
    t1 = 1 << pos['t'][0]
    PL = 65536; OML = PL+8192; QL = OML+2048; DL = QL+2048
    CL = DL+32
    lds = max(lds, DL+96)
    scale = 128**-0.25
    c1 = scale*math.log2(math.e); cneg = -0.5*scale; ism = 8**-0.5
    A(HEADER.rstrip())
    A(f"; @launch grid=({nwg},1,1) block=({NW*64+64},1,1) lds={lds}")
    A('.amdgcn_target "amdgcn-amd-amdhsa--gfx950"')
    A(".text"); A(f".globl {NAME}"); A(".p2align 8"); A(f".type {NAME},@function"); A(f"{NAME}:")
    VO = [1,2,3,4]
    VOL = 5
    RA = [6,7,8,9]
    SEL = [10,11,12,13]
    CNEG, ONE = 14, 15
    ACC, X, W = 16, 20, 24
    RB, PA, A0, A1, BB, DEN, N0, N1, T0, T1, PAT, L16 = 28, 29, 30, 31, 32, 33, 34, 35, 36, 37, 38, 39
    OM = 40
    KR = 56
    CA, PRG, VOLP = 72, 73, 74
    PQ = 76
    TLV, TLL = 80, 81
    nv = 82 if tl else (80 if iw else 75)
    I("s_load_dwordx8 s[4:11], s[0:1], 0")
    I("s_load_dwordx4 s[12:15], s[0:1], 32")
    I("s_load_dwordx2 s[16:17], s[0:1], 48")
    if enc >= 0: fixed = 80
    if enc >= 70: pst = 2
    if stamps or fixed: I("s_memrealtime s[60:61]")
    I(f"s_cmp_ge_u32 s2, {nwg}")
    I("s_cbranch_scc1 L_end")
    I("v_subrev_u32 v0, 64, v0")
    I("v_ashrrev_i32 v20, 6, v0")
    I("v_and_b32 v21, 15, v0          ; n")
    I("v_readfirstlane_b32 s70, v20")
    I("v_bfe_u32 v22, v0, 4, 2        ; g")
    if map[8:] == "xxxcccc" and mem_i == 3:
        I("s_and_b32 s50, s2, 7"); I("s_lshr_b32 s18, s2, 4"); I("s_lshl3_add_u32 s50, s18, s50   ; head")
    else:
        I("s_mov_b32 s50, 0")
        for i,p in enumerate(wgpos):
            if i == mem_i: continue
            I(f"s_bfe_u32 s18, s2, {0x10000+i:#x}"); I(f"s_lshl_b32 s18, s18, {p-20}"); I("s_or_b32 s50, s50, s18")
    I(f"s_bfe_u32 s51, s2, {0x10000+mem_i:#x}      ; member")
    I(f"v_and_b32 v{L16}, 63, v0")
    I(f"v_lshlrev_b32 v{L16}, 4, v{L16}      ; lane*16")
    I("s_cmp_ge_i32 s70, 0")
    I("s_cbranch_scc1 L_stream")
    I("s_lshl_b32 s18, s50, 10")
    I(f"s_mov_b32 s46, {1024+(agg-1)*8192}"); I("s_mov_b32 s47, 0x20000")
    for r in range(4): I(f"v_mov_b32 v{W+r}, -1")
    I(f"s_and_b32 s19, s2, {8 | ((agg-1) << 4)}")
    I("s_waitcnt lgkmcnt(0)")
    I("s_cbranch_scc1 L_h0")
    I("s_add_u32 s44, s16, s18"); I("s_addc_u32 s45, s17, 0")
    if not (np & 1):
        for j in range(agg):
            if j: I(f"s_mov_b32 s18, {8192*j}")
            I(f"buffer_store_dwordx4 v[{W}:{W+3}], v{L16}, s[44:47], {'s18' if j else '0'} offen {sf}")
    A("L_h0:")
    I("s_branch L_helper")
    A("L_stream:")
    if prio: I(f"s_setprio {prio}")
    I(f"s_lshl_b32 s3, s51, {mem_p}")
    if wr:
        assert pos['w'] == [12,13]
        I("s_lshl_b32 s83, s70, 12")
    elif pos['w'] == [12,13]:
        I("s_lshl_b32 s18, s70, 12"); I("s_or_b32 s3, s3, s18")
    else:
        for i,p in enumerate(pos['w']):
            I(f"s_bfe_u32 s18, s70, {0x10000+i:#x}"); I(f"s_lshl_b32 s18, s18, {p}"); I("s_or_b32 s3, s3, s18")
    I(f"v_add_u32 v{VOL}, s3, v{L16}")
    I("v_lshlrev_b32 v23, 6, v22      ; (4g)*16")
    I(f"v_xor_b32 v{VO[0]}, v{VOL}, v23")
    for c in range(1,4): I(f"v_xor_b32 v{VO[c]}, {16*c}, v{VO[0]}")
    I("s_lshl_b32 s71, s70, 14")
    I("s_lshl_b32 s19, s70, 10")
    if kf: I("s_mov_b32 s86, s19")
    I(f"s_add_u32 m0, s19, {OML}")
    I("s_mov_b32 s31, 0x20000"); I("s_movk_i32 s30, 256")
    I("s_lshl_b32 s18, s50, 20")
    I("s_lshl_b32 s55, s50, 8")
    I("s_mov_b32 s22, 0x100000"); I("s_mov_b32 s23, 0x20000")
    I(f"s_mov_b32 s48, {t1:#x}")
    I("s_waitcnt lgkmcnt(0)")
    I("s_add_u32 s4, s4, s55"); I("s_addc_u32 s5, s5, 0")
    I("s_cmp_lt_u32 s70, 2")
    I("s_cselect_b32 s28, s10, s4"); I("s_cselect_b32 s29, s11, s5"); I("s_cselect_b32 s30, 2048, s30"); I("s_cselect_b32 s19, s19, 0")
    if not kf: I(f"buffer_load_dwordx4 v{L16}, s[28:31], s19 offen {qf} lds")
    if pst: I("s_memrealtime s[88:89]")
    I("s_mov_b32 m0, s71")
    I("s_add_u32 s20, s6, s18"); I("s_addc_u32 s21, s7, 0")
    def ld(c, so=None):
      if so is None: so = "s84" if wr else "s48"
      I(f"buffer_load_dwordx4 v{VO[c]}, s[20:23], {so} offen offset:{1024*c} {flags} lds")
    for c in range(4): ld(c, "s83" if wr else "0")
    if kf:
        I(f"s_add_u32 m0, s86, {OML}"); I("s_nop 0")
        I(f"buffer_load_dwordx4 v{L16}, s[28:31], s19 offen {qf} lds")
    I("s_or_b32 m0, s71, 0x1000")
    I("s_movk_i32 s73, 0x1000")
    def wrot():
        if wr == 1: I("s_xor_b32 s84, s83, s73"); I("s_or_b32 s84, s84, s48")
        elif wr == 2: I("s_lshr_b32 s84, s48, 4"); I("s_xor_b32 s84, s84, s83"); I("s_and_b32 s84, s84, 0x3000"); I("s_or_b32 s84, s84, s48")
    wrot()
    for c in range(ib-4): ld(c)
    if pst == 2: I("s_memrealtime s[90:91]")
    I("s_add_u32 s24, s8, s18"); I("s_addc_u32 s25, s9, 0")
    I("s_lshl_b32 s56, s50, 10")
    I("s_add_u32 s44, s16, s56"); I("s_addc_u32 s45, s17, 0"); I("s_movk_i32 s46, 1024"); I("s_mov_b32 s47, 0x20000")
    I("v_and_b32 v16, 3, v21"); I("v_lshlrev_b32 v16, 10, v16")
    I("v_lshrrev_b32 v17, 2, v21"); I("v_lshl_add_u32 v16, v17, 8, v16   ; kappa*256")
    I("v_xor_b32 v18, v22, v21"); I(f"v_lshl_add_u32 v{RB}, v18, 4, v16")
    I("v_lshlrev_b32 v17, 1, v17"); I("v_and_b32 v18, 1, v21"); I("v_add_u32 v17, v17, v18   ; m(i)")
    I(f"s_mov_b32 s58, {OML}")
    I(f"v_lshl_add_u32 v{RA[1]}, v22, 4, s58   ; g*16 + OML"); I(f"v_lshl_add_u32 v{RA[0]}, v17, 8, v{RA[1]}")
    I("s_lshl_b32 s59, s70, 11"); I(f"s_add_u32 s59, s59, {PL}")
    I(f"v_lshl_add_u32 v{PA}, v21, 2, s59")
    I("v_cmp_gt_u32 vcc, 8, v21")
    I("v_mov_b32 v16, 0x0100"); I("v_mov_b32 v17, 0x0302")
    I("v_cndmask_b32 v16, v16, v17, vcc")
    I("v_cmp_eq_u32 vcc, 0, v18")
    I("v_or_b32 v17, 0x0c0c0000, v16")
    I("v_lshlrev_b32 v16, 16, v16"); I("v_or_b32 v16, 0x0c0c, v16")
    I("v_cndmask_b32 v16, v16, v17, vcc")
    I("v_bfe_u32 v18, v21, 1, 2")
    I("v_mov_b32 v17, 0x0c0c0c0c")
    for q in range(4):
        I(f"v_cmp_eq_u32 vcc, {q}, v18"); I("s_nop 1"); I(f"v_cndmask_b32 v{SEL[q]}, v17, v16, vcc")
    I(f"v_mov_b32 v{CNEG}, {f2u(cneg):#x}")
    I(f"v_mov_b32 v{ONE}, 1.0")
    I(f"v_mov_b32 v{DEN}, 0")
    for r in range(4): I(f"v_mov_b32 v{ACC+r}, 0")
    I(f"s_mov_b32 s52, {f2u(c1):#x}"); I(f"s_mov_b32 s53, {f2u(ism):#x}"); I(f"s_mov_b32 s54, {f2u(1e-6):#x}")
    I("s_mov_b32 s74, 0x07060302")
    I("s_add_u32 s36, s12, s55"); I("s_addc_u32 s37, s13, 0"); I("s_movk_i32 s38, 256"); I("s_mov_b32 s39, 0x20000")
    if tl:
        I(f"v_and_b32 v{TLL}, 63, v0"); I(f"v_mov_b32 v{TLV}, 0"); I("s_mov_b32 s78, 0")
    I(f"v_mov_b32 v{PAT}, {pattern(l0):#x}"); I(f"v_mov_b32 v{PRG}, 1")
    if iw:
        for r in range(4): I(f"v_mov_b32 v{PQ+r}, 0")
    I("s_lshl_b32 s18, s70, 2"); I(f"s_add_u32 s18, s18, {CL+16}"); I(f"v_mov_b32 v{CA}, {CL}"); I(f"v_mov_b32 v{VOLP}, s18")
    if pst == 1: I("s_memrealtime s[90:91]")
    I(f"s_waitcnt vmcnt({ib-4 if kf else ib})")
    if pst: I("s_memrealtime s[92:93]")
    I("s_barrier")
    if pst: I("s_memrealtime s[94:95]"); I("s_waitcnt lgkmcnt(0)")
    for c in range(4): I(f"ds_read_b128 v[{OM+4*c}:{OM+4*c+3}], v{RA[0]} offset:{64*c}")
    for c in range(4): I(f"ds_read_b128 v[{KR+4*c}:{KR+4*c+3}], v{RA[1]} offset:{2048+64*c}")
    def proj():
        I(f"v_mov_b32 v{N0}, 0"); I(f"v_mov_b32 v{N1}, 0")
        for c in range(4):
            I(f"s_waitcnt lgkmcnt({3-c})")
            srcc = "0" if c == 0 else f"v[{X}:{X+3}]"
            I(f"v_mfma_f32_16x16x32_bf16 v[{X}:{X+3}], v[{OM+4*c}:{OM+4*c+3}], v[{KR+4*c}:{KR+4*c+3}], {srcc}")
            for j in range(4): I(f"v_dot2c_f32_bf16 v{N0+(j&1)}, v{KR+4*c+j}, v{KR+4*c+j}")
        I("s_nop 2")
        I(f"v_add_f32 v{N0}, v{N0}, v{N1}")
        I("s_nop 1")
        I(f"v_mfma_f32_16x16x4_f32 v[{X}:{X+3}], v{CNEG}, v{N0}, v[{X}:{X+3}]")
    proj()
    I("s_nop 9")
    I(f"v_mul_f32 v{A0}, s52, v{X}"); I(f"v_mul_f32 v{A1}, s52, v{X+1}")
    I(f"v_exp_f32 v{A0}, v{A0}"); I(f"v_exp_f32 v{A1}, v{A1}")
    I(f"v_mov_b32 v{T0}, s54")
    I(f"v_fma_f32 v{A0}, v{A0}, s53, v{T0}"); I(f"v_fma_f32 v{A1}, v{A1}, s53, v{T0}")
    I(f"v_add_f32 v{BB}, v{A0}, v{A1}"); I(f"v_mul_f32 v{BB}, s54, v{BB}")
    I(f"v_mul_f32 v{A0}, s53, v{A0}"); I(f"v_mul_f32 v{A1}, s53, v{A1}")
    for c in range(ib-4, 4):
        I("s_waitcnt vmcnt(4)"); ld(c)
    nlab = [0]
    def wait(lims, j):
        if j in so:
            nlab[0] += 1
            I(f"s_cmp_ge_u32 s80, {4*(so.index(j)+1)+neg}")
            I(f"s_cbranch_scc1 L_p{nlab[0]}")
            I(f"s_waitcnt vmcnt({lims[j]-1})")
            if neg and so.index(j) == 0:
                I(f"s_cmp_ge_u32 s80, {neg}")
                I(f"s_cbranch_scc1 L_p{nlab[0]}")
                I(f"s_waitcnt vmcnt({lims[j]-2})")
            A(f"L_p{nlab[0]}:")
        else: I(f"s_waitcnt vmcnt({lims[j]-1})")
    def top():
        if tl: I("s_memrealtime s[76:77]")
        if 0 <= enc < 64:
            nlab[0] += 1
            I("s_add_u32 s78, s78, 1"); I(f"s_cmp_lg_u32 s78, {enc+1}"); I(f"s_cbranch_scc1 L_e{nlab[0]}")
            I("s_memrealtime s[98:99]"); I("s_waitcnt lgkmcnt(0)"); A(f"L_e{nlab[0]}:")
        if iw:
            I(f"v_add3_u32 v{PQ}, v{PQ}, v{PQ+1}, v{PQ+2}")
            I(f"v_mad_i32_i24 v{PQ+3}, v{PRG}, -4, v{PQ+3}")
            I(f"v_add3_u32 v{PQ}, v{PQ}, v{PQ+3}, {io}")
            I(f"v_mad_i32_i24 v{PAT}, v{PQ}, {iw}, v{PAT}")
            I(f"v_max_i32 v{PAT}, 0, v{PAT}")
            I(f"v_add_u32 v{PRG}, 1, v{PRG}")
            I(f"v_readfirstlane_b32 s80, v{PAT}")
            I(f"ds_write_b32 v{VOLP}, v{PRG}")
            I(f"ds_read_b32 v{PAT}, v{CA}")
            I(f"ds_read_b128 v[{PQ}:{PQ+3}], v{CA} offset:16")
        else:
            I(f"v_readfirstlane_b32 s80, v{PAT}")
            I(f"v_add_u32 v{PRG}, 1, v{PRG}")
            I(f"ds_read_b32 v{PAT}, v{CA}")
            I(f"ds_write_b32 v{VOLP}, v{PRG}")
        I(f"s_or_b32 s48, s48, {(~tmask) & 0xffffffff:#x}"); I("s_add_u32 s48, s48, 1"); I(f"s_and_b32 s48, s48, {tmask:#x}")
        I("s_add_u32 s73, s73, 0x1000"); I("s_and_b32 s73, s73, 0x3000"); I("s_or_b32 m0, s71, s73"); I("s_xor_b32 s72, m0, 0x2000")
        I("s_lshr_b32 s81, s73, 12"); I("s_add_u32 s80, s80, s81")
        if tl:
            I("s_waitcnt lgkmcnt(0)"); I("s_sub_u32 s76, s76, s60"); I(f"v_mov_b32 v{T1}, s76"); I(f"v_cmp_eq_u32 vcc, s78, v{TLL}"); I("s_add_u32 s78, s78, 1"); I("s_nop 0")
            I(f"v_cndmask_b32 v{TLV}, v{TLV}, v{T1}, vcc")
    def kslot(lims):
        done = []; cur = -99
        for j in range(4):
            cur = max(cur, 8+j-lims[j]-(9 if j in slots else 0)); done.append(cur)
        return min(j for j in range(4) if done[j] >= 3)
    def k_addr():
        I(f"v_add_u32 v{RA[0]}, s72, v{RB}")
        for c in range(1,4): I(f"v_xor_b32 v{RA[c]}, {64*c}, v{RA[0]}")
    def k_read():
        for c in range(4): I(f"ds_read_b128 v[{KR+4*c}:{KR+4*c+3}], v{RA[c]}")
    def k_exp():
        I("s_nop 7")
        I(f"v_mul_f32 v{T0}, s52, v{X}"); I(f"v_mul_f32 v{T1}, s52, v{X+1}")
        I(f"v_exp_f32 v{T0}, v{T0}"); I(f"v_exp_f32 v{T1}, v{T1}")
        I("s_nop 0")
        I(f"v_fma_f32 v{T0}, v{A0}, v{T0}, v{BB}"); I(f"v_fma_f32 v{T0}, v{A1}, v{T1}, v{T0}")
        I(f"v_add_f32 v{DEN}, v{DEN}, v{T0}")
        I("s_nop 0")
        I(f"v_mfma_f32_16x16x4_f32 v[{W}:{W+3}], v{ONE}, v{T0}, 0")
    def k_pack():
        I("s_nop 7")
        I(f"v_and_b32 v{T0}, 0xffff0000, v{W}"); I(f"v_sub_f32 v{T0}, v{W}, v{T0}")
        I(f"v_perm_b32 v{T0}, v{W}, v{T0}, s74")
        I("s_mov_b64 exec, 0xffff")
        I(f"ds_write_b32 v{PA}, v{T0}")
        I("s_mov_b64 exec, -1")
        I(f"v_add_u32 v{PA}, 64, v{PA}")
    ks = kslot(klims)
    sched = {0: [k_read], 1: [proj], 2: [k_exp], 3: [k_pack]} if ks == 0 else {0: [], 1: [k_read, proj], 2: [k_exp], 3: [k_pack]}
    assert ks <= 1
    if sb: I("s_mov_b32 s86, 0")
    if enc >= 0: I("s_mov_b32 s78, 0")
    A("L_kloop:")
    top()
    I("s_cmp_lg_u32 s48, 0x100000")
    I("s_cbranch_scc1 L_kgo")
    I("s_mov_b32 s48, 0"); I("s_mov_b32 s20, s24"); I("s_mov_b32 s21, s25")
    for c in range(4): I(f"v_mov_b32 v{VO[c]}, v{VOL}")
    if sb: I(f"s_mov_b32 s86, {sb}")
    A("L_kgo:")
    if sb: I("s_max_u32 s80, s80, s86")
    wrot()
    k_addr()
    for j in range(4):
        wait(klims, j); ld(j)
        for f in sched[j]: f()
    I(f"s_cmp_lg_u32 s48, {t1:#x}")
    I("s_cbranch_scc1 L_kloop")
    def p_read():
        I(f"ds_read_b128 v[{W}:{W+3}], v{PA}")
        I(f"v_add_u32 v{PA}, 64, v{PA}")
    def perms(rs, w=True):
        if w: I("s_waitcnt lgkmcnt(0)")
        for r in rs:
            for q in range(4): I(f"v_perm_b32 v{OM+4*r+q}, v{W+r}, v{W+r}, v{SEL[q]}")
    A("L_switch:")
    I(f"v_bfe_u32 v{T0}, v0, 4, 2")
    I(f"v_lshl_add_u32 v{PA}, v{T0}, 4, s59")
    p_read()
    for sh in (8,4,2,1):
        I(f"v_add_f32 v{DEN}, v{DEN}, v{DEN} row_ror:{sh}"); I("s_nop 1")
    I(f"v_mfma_f32_16x16x4_f32 v[{X}:{X+3}], v{ONE}, v{DEN}, 0")
    perms(range(4))
    I("s_lshl_b32 s18, s70, 2"); I(f"s_add_u32 s18, s18, {DL}"); I(f"v_mov_b32 v{T0}, s18")
    I("s_mov_b64 exec, 1")
    I(f"ds_write_b32 v{T0}, v{X}")
    I("s_mov_b64 exec, -1")
    I(f"v_and_b32 v{T0}, 15, v0"); I(f"v_lshl_add_u32 v{RA[1]}, v{T0}, 5, s59"); I(f"v_bfe_u32 v{T0}, v0, 4, 1"); I(f"v_lshl_add_u32 v{RA[1]}, v{T0}, 4, v{RA[1]}")
    I(f"v_bfe_u32 v{T0}, v0, 5, 1"); I(f"v_lshl_add_u32 v{RA[1]}, v{T0}, 9, v{RA[1]}")
    I(f"s_mov_b32 s18, {PL}"); I(f"v_lshl_add_u32 v{RA[2]}, v0, 2, s18"); I(f"v_mov_b32 v{RA[3]}, {DL}")
    I(f"v_lshlrev_b32 v{A0}, 3, v0"); I(f"v_lshlrev_b32 v{A1}, 1, v0")
    vs = kslot(vlims)
    assert vs <= 1
    def v_mm():
        for r in range(4): I(f"ds_read_b128 v[{KR+4*r}:{KR+4*r+3}], v{RA[0]} offset:{1024*r}")
        for r in range(4):
            I(f"s_waitcnt lgkmcnt({3-r})")
            I(f"v_mfma_f32_16x16x32_bf16 v[{ACC}:{ACC+3}], v[{OM+4*r}:{OM+4*r+3}], v[{KR+4*r}:{KR+4*r+3}], v[{ACC}:{ACC+3}]")
        I(f"s_cmp_eq_u32 s48, {0x100000+t1:#x}")
        I("s_cbranch_scc1 L_done")
    if vs == 0: sched = {0: [v_mm], 1: [p_read], 2: [lambda: perms([0,1])], 3: [lambda: perms([2,3], False)]}
    else: sched = {0: [], 1: [v_mm, p_read], 2: [lambda: perms([0,1])], 3: [lambda: perms([2,3], False)]}
    A("L_vloop:")
    top()
    wrot()
    I(f"v_add_u32 v{RA[0]}, s72, v{L16}")
    for j in range(4):
        wait(vlims, j); ld(j)
        for f in sched[j]: f()
    I("s_branch L_vloop")
    A("L_done:")
    if stamps: I("s_memrealtime s[62:63]")
    if enc == 64: I("s_memrealtime s[98:99]")
    if wv:
        I("s_waitcnt lgkmcnt(0)"); I(f"v_mov_b32 v{T1}, s62"); I(f"ds_write_b32 v{VOLP}, v{T1} offset:16")
    if ts: I("s_memtime s[88:89]")
    I("s_nop 4")
    I("s_cmp_ge_u32 s70, 2")
    I(f"ds_write_b128 v{RA[1]}, v[{ACC}:{ACC+3}]")
    I("s_waitcnt lgkmcnt(0)")
    I("s_barrier")
    I("s_cbranch_scc1 L_end")
    if ts: I("s_memtime s[90:91]")
    for w in range(4): I(f"ds_read2st64_b32 v[{40+2*w}:{41+2*w}], v{RA[2]} offset0:{8*w} offset1:{8*w+2}")
    I(f"ds_read_b128 v[48:51], v{RA[3]}")
    I("s_waitcnt lgkmcnt(0)")
    I("v_pk_add_f32 v[40:41], v[40:41], v[42:43]"); I("v_pk_add_f32 v[44:45], v[44:45], v[46:47]")
    I("v_pk_add_f32 v[48:49], v[48:49], v[50:51]"); I("v_pk_add_f32 v[40:41], v[40:41], v[44:45]")
    I("v_add_f32 v43, v48, v49"); I("v_add_f32 v42, v40, v41")
    I("v_and_b32 v41, 0x7fffffff, v43"); I("v_mov_b32 v40, v42")
    if ts: I("s_memtime s[92:93]")
    I(f"buffer_atomic_swap_x2 v[40:41], v{A0}, s[44:47], 0 offen sc0")
    I("s_waitcnt vmcnt(0)")
    if ts: I("s_memtime s[94:95]")
    I("v_cmp_le_i32 vcc, 0, v41")
    I("s_and_saveexec_b64 s[56:57], vcc")
    I("s_cbranch_execz L_fin")
    I("v_add_f32 v43, v43, v41"); I("v_add_f32 v43, s54, v43"); I("v_rcp_f32 v44, v43"); I("v_add_f32 v42, v42, v40")
    I("v_fma_f32 v45, -v43, v44, 1.0"); I("v_fma_f32 v44, v45, v44, v44")
    I("v_mul_f32 v42, v42, v44")
    I("v_cvt_pk_bf16_f32 v42, v42, v42")
    I(f"buffer_store_short v42, v{A1}, s[36:39], 0 offen {oflags}")
    A("L_fin:")
    if fixed or stamps:
        I("s_mov_b64 exec, -1")
        I("s_cmp_lg_u32 s70, 0"); I("s_cbranch_scc1 L_end")
    if enc >= 0:
        if enc == 65: I("s_memrealtime s[98:99]")
        if enc >= 70: I(f"s_mov_b32 s98, s{88+2*(enc-70)}")
        I("s_waitcnt lgkmcnt(0)")
        I("s_sub_u32 s98, s98, s60")
        for lab, t in (("L_s1", 5500), ("L_s2", 7000)):
            A(lab+":")
            I("s_memrealtime s[68:69]"); I("s_waitcnt lgkmcnt(0)"); I("s_sub_u32 s68, s68, s60")
            I(f"s_cmp_lt_u32 s68, {t}"); I(f"s_cbranch_scc1 {lab}")
            if lab == "L_s1": I(("s_atomic_add" if em == 's' else "s_atomic_umax") + " s98, s[14:15], 32"); I("s_waitcnt lgkmcnt(0)")
        I("s_mov_b32 s98, 0"); I("s_atomic_or s98, s[14:15], 32 glc"); I("s_waitcnt lgkmcnt(0)")
        I("s_mul_i32 s98, s98, 10")
        if em == 's': I("s_lshr_b32 s98, s98, 8")
        I(f"s_sub_i32 s98, s98, {eo*1000}"); I("s_max_i32 s98, s98, 0"); I("s_min_i32 s98, s98, 15000")
        I("s_add_u32 s60, s60, s98")
    if fixed:
        A("L_spin:")
        I("s_memrealtime s[68:69]"); I("s_waitcnt lgkmcnt(0)"); I("s_sub_u32 s68, s68, s60")
        I(f"s_cmp_lt_i32 s68, {fixed*100}"); I("s_cbranch_scc1 L_spin")
    if stamps:
        if ts:
            I("s_waitcnt vmcnt(0)"); I("s_memtime s[96:97]")
        I("s_memrealtime s[64:65]")
        I("s_getreg_b32 s66, hwreg(HW_REG_XCC_ID)"); I("s_getreg_b32 s67, hwreg(HW_REG_HW_ID)")
        I("s_waitcnt lgkmcnt(0)")
        I("s_mov_b32 s61, 0"); I("s_sub_u32 s63, s64, s62")
        if wv:
            I(f"ds_read_b128 v[40:43], v{CA} offset:32"); I("s_waitcnt lgkmcnt(0)")
            for r in range(4): I(f"v_readfirstlane_b32 s{88+2*r}, v{40+r}")
            I("s_nop 1")
            for r in (88,90,92,94): I(f"s_sub_u32 s{r}, s64, s{r}")
            I("s_pack_ll_b32_b16 s61, s88, s90"); I("s_pack_ll_b32_b16 s65, s92, s94")
        if pst:
            for r in (88,90,92,94): I(f"s_sub_u32 s{r}, s{r}, s60")
            I("s_pack_ll_b32_b16 s61, s88, s90"); I("s_pack_ll_b32_b16 s65, s92, s94")
        if ts:
            I("s_sub_u32 s96, s96, s94"); I("s_sub_u32 s94, s94, s92"); I("s_sub_u32 s92, s92, s90"); I("s_sub_u32 s90, s90, s88")
            I("s_pack_ll_b32_b16 s61, s90, s92"); I("s_pack_ll_b32_b16 s65, s94, s96")
        for j in range(8): I(f"v_mov_b32 v{20+j}, s{60+j}")
        I("s_add_u32 s44, s16, 0x100000"); I("s_addc_u32 s45, s17, 0"); I("s_mov_b32 s46, 0x100000")
        if tl:
            I("s_lshl_b32 s55, s2, 8"); I("s_add_u32 s55, s55, 0x80000"); I(f"v_lshlrev_b32 v{TLL}, 2, v{TLL}")
            I(f"buffer_store_dword v{TLV}, v{TLL}, s[44:47], s55 offen")
        I("s_lshl_b32 s55, s2, 5"); I("v_mov_b32 v14, 0"); I("s_mov_b64 exec, 1")
        I("buffer_store_dwordx4 v[20:23], v14, s[44:47], s55 offen")
        I("buffer_store_dwordx4 v[24:27], v14, s[44:47], s55 offen offset:16")
    A("L_end:")
    I("s_endpgm")
    A("L_helper:")
    I(f"v_mov_b32 v1, {CL}"); I(f"v_mov_b32 v2, {pattern(l0):#x}")
    for r in range(4): I(f"v_mov_b32 v{4+r}, 1")
    I("ds_write_b32 v1, v2"); I("ds_write_b128 v1, v[4:7] offset:16")
    I(f"s_add_u32 s16, s16, {CB:#x}"); I("s_addc_u32 s17, s17, 0")
    I("s_waitcnt lgkmcnt(0)")
    I("s_barrier")
    I(f"s_cmp_ge_u32 s2, {8*len(cpl)}")
    I("s_cbranch_scc1 L_h1")
    I("s_lshl_b32 s18, s2, 8"); I("s_mov_b32 s20, 0")
    I("s_atomic_swap s20, s[16:17], s18")
    A("L_h1:")
    I(f"s_andn2_b32 s56, s50, {(agg-1)*8}")
    I("s_lshl_b32 s57, 1, s56"); I("s_lshr_b32 s56, s56, 5"); I("s_lshl_b32 s56, s56, 6")
    I("s_cmp_lg_u32 s19, 0")
    I("s_cbranch_scc1 L_h2")
    I("s_waitcnt vmcnt(0)")
    I("s_atomic_or s57, s[14:15], s56")
    A("L_h2:")
    if cw:
        I(f"s_sleep {cw}")
        I("s_getpc_b64 s[24:25]")
        A("L_pc:")
        I("s_sub_u32 s24, s24, L_pc-L_switch"); I("s_subb_u32 s25, s25, 0")
        for j in range(9): I(f"s_load_dword s{26+j}, s[24:25], {128*j}")
    if hop:
        I(f"s_sleep {hop}")
        I("s_mov_b64 exec, 0")
        I("s_branch L_hop0")
        A("L_hopend:")
        I("s_mov_b64 exec, -1")
    if tw:
        I("s_lshl_b32 s18, s50, 20"); I("s_add_u32 s8, s8, s18"); I("s_addc_u32 s9, s9, 0"); I("s_lshl_b32 s18, s50, 8")
        I("s_sleep 64")
        if tw & 1: I("s_load_dword s21, s[8:9], 0")
        if tw & 2: I("s_load_dword s22, s[12:13], s18")
    I("s_bfe_u32 s52, s2, 0x30003"); I("s_lshl_b32 s52, s52, 8")
    for i in range(4): I(f"s_mov_b32 s{80+i}, {sum(lvn[8*i+j] << (4*j) for j in range(8)):#x}")
    cm = sum(1 << x for x in cpl)
    I(f"s_mov_b32 s84, {cm & 0xffffffff:#x}"); I(f"s_mov_b32 s85, {cm >> 32:#x}")
    A("L_hl:")
    I("s_ff1_i32_b64 s53, s[84:85]")
    I("s_cmp_lt_i32 s53, 0")
    I("s_cbranch_scc1 L_hf")
    I("s_bitset0_b64 s[84:85], s53")
    I("s_lshl_b32 s53, s53, 2")
    A("L_hp:")
    I(f"s_sleep {slp}"); I("ds_read_b128 v[4:7], v1 offset:16"); I("s_waitcnt lgkmcnt(0)")
    I("v_add_u32 v4, v4, v5"); I("v_add3_u32 v4, v4, v6, v7"); I("s_nop 0"); I("v_readfirstlane_b32 s55, v4"); I("s_nop 1")
    I("s_cmp_lt_u32 s55, s53"); I("s_cbranch_scc1 L_hp")
    I("s_mov_b32 s55, 1"); I("s_atomic_add s55, s[16:17], s52 glc")
    I("s_add_u32 s52, s52, 2048")
    I("s_waitcnt lgkmcnt(0)")
    I("s_bitcmp1_b32 s55, 4"); I("s_cselect_b64 s[58:59], s[82:83], s[80:81]")
    I("s_lshl_b32 s55, s55, 2"); I("s_lshr_b64 s[58:59], s[58:59], s55"); I("s_and_b32 s58, s58, 15")
    I("v_mov_b32 v2, s58"); I("ds_write_b32 v1, v2")
    I("s_branch L_hl")
    A("L_hf:")
    if fchk:
        I("s_load_dword s20, s[14:15], s56")
        A("L_hf1:")
        I("s_waitcnt lgkmcnt(0)")
        I("s_and_b32 s20, s20, s57")
        I("s_cbranch_scc1 L_hx")
        I("s_sleep 16")
        I("s_atomic_or s20, s[14:15], s56 glc")
        I("s_branch L_hf1")
    A("L_hx:")
    if eb:
        I(f"s_sleep {slp}"); I("ds_read_b128 v[4:7], v1 offset:16"); I("s_waitcnt lgkmcnt(0)")
        I("v_add_u32 v4, v4, v5"); I("v_add3_u32 v4, v4, v6, v7"); I("s_nop 0"); I("v_readfirstlane_b32 s55, v4"); I("s_nop 1")
        I(f"s_cmp_lt_u32 s55, {4*eb}"); I("s_cbranch_scc1 L_hx")
        I(f"v_max_u32 v2, {el}, v2"); I("ds_write_b32 v1, v2")
    I("s_endpgm")
    A('.section .rodata,"a"'); A(".p2align 6"); A(f".amdhsa_kernel {NAME}")
    A(f"  .amdhsa_next_free_vgpr {nv}"); A("  .amdhsa_next_free_sgpr 100"); A(f"  .amdhsa_accum_offset {(nv+3)//4*4}")
    A("  .amdhsa_group_segment_fixed_size 0"); A("  .amdhsa_kernarg_size 56"); A("  .amdhsa_user_sgpr_count 2")
    A("  .amdhsa_user_sgpr_kernarg_segment_ptr 1"); A("  .amdhsa_system_sgpr_workgroup_id_x 1")
    A("  .amdhsa_float_denorm_mode_32 3")
    A(".end_amdhsa_kernel")
    if hop: L = add_hops(L)
    return "\n".join(L)+"\n"

if __name__ == "__main__":
    d = sys.argv[1]
    os.makedirs(d, exist_ok=True)
    for spec in sys.argv[2:]:
        kv = {}
        parts = spec.split(",")
        kv['map'] = parts[0]
        for t in parts[1:]:
            k, v = t.split("=")
            kv[k] = v if k in ('klims','vlims','lv','cps','so') else (int(v, 0) if v[0].isdigit() else v.replace("+", " "))
        name = spec.replace("=", "").replace(",", "_")
        open(f"{d}/{name}.s", "w").write(gen(**kv))
```

```python
import sys, struct, math, os
def f2u(x): return struct.unpack('<I', struct.pack('<f', x))[0]
HEADER = """; Kernarg layout for this problem (56 bytes, ptrs only, base s[0:1]):
"""
NAME = "standalone__linear_kernel_rfa__decode_kernel"

def isize(line):
    t = line.split(';')[0].strip()
    if not t or t.endswith(':') or t.startswith('.'): return 0
    import re
    op = t.split()[0]
    if op.startswith(('buffer_','ds_','v_mfma','v_perm','v_fma','v_pk_','v_lshl_add','v_bfe','v_add3','v_mad','v_cvt_pk','s_load','s_atomic','s_mem')): return 8
    if 'row_ror' in t: return 8
    lits = re.findall(r'(?<![\w\[:])(0x[0-9a-fA-F]+|\d+)(?![\w\]:(])', t.split(None,1)[1] if ' ' in t else '')
    if op.startswith(('s_nop','s_waitcnt','s_sleep','s_movk','s_cbranch','s_branch','s_setprio')): return 4
    for x in lits:
        if int(x, 0) > 64: return 8
    return 4
def add_hops(L):
    out = []; on = False; n = 0; acc = 0
    for i, line in enumerate(L):
        if line.startswith('L_switch:'):
            out.append(line); on = True; acc = 99; continue
        if on and line.startswith('L_fin:'):
            on = False
            out.append("    s_branch L_fin")
            out.append(f"L_hop{n}:"); out.append("    s_branch L_hopend")
        if on:
            sz = isize(line)
            if sz and (acc + sz > 56 or ('saveexec' in line and acc + sz + 4 > 56)) and 'saveexec' not in L[i-1]:
                out.append(f"L_hop{n}:"); out.append(f"    s_cbranch_execz L_hop{n+1}"); n += 1; acc = 0
            acc += sz
        out.append(line)
    return out

def gen(map="wwtcttttxxxcccc", klims="5555", vlims="5555", flags="nt", lds=0, stamps=0, fixed=0, tl=0, tag=0, oflags="", par=0,
        ib=8, slp=3, np=0, ts=0, sf='sc0 sc1', qf='', agg=8, lv='0000123456789acf', l0=3, cps='9.18.27.36.44.51.56.60', so='312', fchk=1, neg=2, eb=0, el=12, pst=0, prio=3, wv=0, wr=0, sb=0, tw=0, kf=0, cw=0, hop=0, iw=2, io=2, enc=-1, em='s', eo=0):
    L = []; A = L.append
    so = [int(c) for c in str(so)]
    slots = so
    lv = str(lv); lv = "".join(ch*(32//len(lv)) for ch in lv)
    lvn = [int(ch, 16) for ch in lv]; assert len(lvn) == 32
    def pattern(l): return l
    cpl = [int(x) for x in str(cps).split('.')]
    assert len(cpl) <= 12
    CB = 0x20000
    def I(s): A("    "+s)
    NW = 4; nwg = 256
    klims = [int(c) for c in str(klims)]; vlims = [int(c) for c in str(vlims)]
    pos = {k: [12+i for i,ch in enumerate(map) if ch == k] for k in "wtxc"}
    assert len(pos['w']) == 2 and len(pos['t']) == 5 and max(pos['w']+pos['t']) < 20
    wgpos = pos['x']+pos['c']
    mem_i = [i for i,p in enumerate(wgpos) if p < 20]
    assert len(mem_i) == 1
    mem_i = mem_i[0]; mem_p = wgpos[mem_i]
    assert map[8:] == 'xxxcccc' and mem_i == 3
    tmask = sum(1 << p for p in pos['t']) | (1 << 20)
    t1 = 1 << pos['t'][0]
    PL = 65536; OML = PL+8192; QL = OML+2048; DL = QL+2048
    CL = DL+32
    lds = max(lds, DL+96)
    scale = 128**-0.25
    c1 = scale*math.log2(math.e); cneg = -0.5*scale; ism = 8**-0.5
    A(HEADER.rstrip())
    A(f"; @launch grid=({nwg},1,1) block=({NW*64+64},1,1) lds={lds}")
    A('.amdgcn_target "amdgcn-amd-amdhsa--gfx950"')
    A(".text"); A(f".globl {NAME}"); A(".p2align 8"); A(f".type {NAME},@function"); A(f"{NAME}:")
    VO = [1,2,3,4]
    VOL = 5
    RA = [6,7,8,9]
    SEL = [10,11,12,13]
    CNEG, ONE = 14, 15
    ACC, X, W = 16, 20, 24
    RB, PA, A0, A1, BB, DEN, N0, N1, T0, T1, PAT, L16 = 28, 29, 30, 31, 32, 33, 34, 35, 36, 37, 38, 39
    OM = 40
    KR = 56
    CA, PRG, VOLP = 72, 73, 74
    PQ = 76
    TLV, TLL = 80, 81
    nv = 82 if tl else (80 if iw else 75)
    I("s_load_dwordx8 s[4:11], s[0:1], 0")
    I("s_load_dwordx4 s[12:15], s[0:1], 32")
    I("s_load_dwordx2 s[16:17], s[0:1], 48")
    if enc >= 0: fixed = 80
    if enc >= 70: pst = 2
    if stamps or fixed: I("s_memrealtime s[60:61]")
    I(f"s_cmp_ge_u32 s2, {nwg}")
    I("s_cbranch_scc1 L_end")
    I("v_subrev_u32 v0, 64, v0")
    I("v_ashrrev_i32 v20, 6, v0")
    I("v_and_b32 v21, 15, v0          ; n")
    I("v_readfirstlane_b32 s70, v20")
    I("v_bfe_u32 v22, v0, 4, 2        ; g")
    if map[8:] == "xxxcccc" and mem_i == 3:
        I("s_and_b32 s50, s2, 7"); I("s_lshr_b32 s18, s2, 4"); I("s_lshl3_add_u32 s50, s18, s50   ; head")
    else:
        I("s_mov_b32 s50, 0")
        for i,p in enumerate(wgpos):
            if i == mem_i: continue
            I(f"s_bfe_u32 s18, s2, {0x10000+i:#x}"); I(f"s_lshl_b32 s18, s18, {p-20}"); I("s_or_b32 s50, s50, s18")
    I(f"s_bfe_u32 s51, s2, {0x10000+mem_i:#x}      ; member")
    I(f"v_and_b32 v{L16}, 63, v0")
    I(f"v_lshlrev_b32 v{L16}, 4, v{L16}      ; lane*16")
    I("s_cmp_ge_i32 s70, 0")
    I("s_cbranch_scc1 L_stream")
    I("s_lshl_b32 s18, s50, 10")
    I(f"s_mov_b32 s46, {1024+(agg-1)*8192}"); I("s_mov_b32 s47, 0x20000")
    for r in range(4): I(f"v_mov_b32 v{W+r}, -1")
    I(f"s_and_b32 s19, s2, {8 | ((agg-1) << 4)}")
    I("s_waitcnt lgkmcnt(0)")
    I("s_cbranch_scc1 L_h0")
    I("s_add_u32 s44, s16, s18"); I("s_addc_u32 s45, s17, 0")
    if not (np & 1):
        for j in range(agg):
            if j: I(f"s_mov_b32 s18, {8192*j}")
            I(f"buffer_store_dwordx4 v[{W}:{W+3}], v{L16}, s[44:47], {'s18' if j else '0'} offen {sf}")
    A("L_h0:")
    I("s_branch L_helper")
    A("L_stream:")
    if prio: I(f"s_setprio {prio}")
    I(f"s_lshl_b32 s3, s51, {mem_p}")
    if wr:
        assert pos['w'] == [12,13]
        I("s_lshl_b32 s83, s70, 12")
    elif pos['w'] == [12,13]:
        I("s_lshl_b32 s18, s70, 12"); I("s_or_b32 s3, s3, s18")
    else:
        for i,p in enumerate(pos['w']):
            I(f"s_bfe_u32 s18, s70, {0x10000+i:#x}"); I(f"s_lshl_b32 s18, s18, {p}"); I("s_or_b32 s3, s3, s18")
    I(f"v_add_u32 v{VOL}, s3, v{L16}")
    I("v_lshlrev_b32 v23, 6, v22      ; (4g)*16")
    I(f"v_xor_b32 v{VO[0]}, v{VOL}, v23")
    for c in range(1,4): I(f"v_xor_b32 v{VO[c]}, {16*c}, v{VO[0]}")
    I("s_lshl_b32 s71, s70, 14")
    I("s_lshl_b32 s19, s70, 10")
    if kf: I("s_mov_b32 s86, s19")
    I(f"s_add_u32 m0, s19, {OML}")
    I("s_mov_b32 s31, 0x20000"); I("s_movk_i32 s30, 256")
    I("s_lshl_b32 s18, s50, 20")
    I("s_lshl_b32 s55, s50, 8")
    I("s_mov_b32 s22, 0x100000"); I("s_mov_b32 s23, 0x20000")
    I(f"s_mov_b32 s48, {t1:#x}")
    I("s_waitcnt lgkmcnt(0)")
    I("s_add_u32 s4, s4, s55"); I("s_addc_u32 s5, s5, 0")
    I("s_cmp_lt_u32 s70, 2")
    I("s_cselect_b32 s28, s10, s4"); I("s_cselect_b32 s29, s11, s5"); I("s_cselect_b32 s30, 2048, s30"); I("s_cselect_b32 s19, s19, 0")
    if not kf and not (np & 16): I(f"buffer_load_dwordx4 v{L16}, s[28:31], s19 offen {qf} lds")
    if pst: I("s_memrealtime s[88:89]")
    I("s_mov_b32 m0, s71")
    I("s_add_u32 s20, s6, s18"); I("s_addc_u32 s21, s7, 0")
    def ld(c, so=None):
      if so is None: so = "s84" if wr else "s48"
      I(f"buffer_load_dwordx4 v{VO[c]}, s[20:23], {so} offen offset:{1024*c} {flags} lds")
    for c in range(4): ld(c, "s83" if wr else "0")
    if kf:
        I(f"s_add_u32 m0, s86, {OML}"); I("s_nop 0")
        I(f"buffer_load_dwordx4 v{L16}, s[28:31], s19 offen {qf} lds")
    I("s_or_b32 m0, s71, 0x1000")
    I("s_movk_i32 s73, 0x1000")
    def wrot():
        if wr == 1: I("s_xor_b32 s84, s83, s73"); I("s_or_b32 s84, s84, s48")
        elif wr == 2: I("s_lshr_b32 s84, s48, 4"); I("s_xor_b32 s84, s84, s83"); I("s_and_b32 s84, s84, 0x3000"); I("s_or_b32 s84, s84, s48")
    wrot()
    for c in range(ib-4): ld(c)
    if pst == 2: I("s_memrealtime s[90:91]")
    I("s_add_u32 s24, s8, s18"); I("s_addc_u32 s25, s9, 0")
    I("s_lshl_b32 s56, s50, 10")
    I("s_add_u32 s44, s16, s56"); I("s_addc_u32 s45, s17, 0"); I("s_movk_i32 s46, 1024"); I("s_mov_b32 s47, 0x20000")
    I("v_and_b32 v16, 3, v21"); I("v_lshlrev_b32 v16, 10, v16")
    I("v_lshrrev_b32 v17, 2, v21"); I("v_lshl_add_u32 v16, v17, 8, v16   ; kappa*256")
    I("v_xor_b32 v18, v22, v21"); I(f"v_lshl_add_u32 v{RB}, v18, 4, v16")
    I("v_lshlrev_b32 v17, 1, v17"); I("v_and_b32 v18, 1, v21"); I("v_add_u32 v17, v17, v18   ; m(i)")
    I(f"s_mov_b32 s58, {OML}")
    I(f"v_lshl_add_u32 v{RA[1]}, v22, 4, s58   ; g*16 + OML"); I(f"v_lshl_add_u32 v{RA[0]}, v17, 8, v{RA[1]}")
    I("s_lshl_b32 s59, s70, 11"); I(f"s_add_u32 s59, s59, {PL}")
    I(f"v_lshl_add_u32 v{PA}, v21, 2, s59")
    I("v_cmp_gt_u32 vcc, 8, v21")
    I("v_mov_b32 v16, 0x0100"); I("v_mov_b32 v17, 0x0302")
    I("v_cndmask_b32 v16, v16, v17, vcc")
    I("v_cmp_eq_u32 vcc, 0, v18")
    I("v_or_b32 v17, 0x0c0c0000, v16")
    I("v_lshlrev_b32 v16, 16, v16"); I("v_or_b32 v16, 0x0c0c, v16")
    I("v_cndmask_b32 v16, v16, v17, vcc")
    I("v_bfe_u32 v18, v21, 1, 2")
    I("v_mov_b32 v17, 0x0c0c0c0c")
    for q in range(4):
        I(f"v_cmp_eq_u32 vcc, {q}, v18"); I("s_nop 1"); I(f"v_cndmask_b32 v{SEL[q]}, v17, v16, vcc")
    I(f"v_mov_b32 v{CNEG}, {f2u(cneg):#x}")
    I(f"v_mov_b32 v{ONE}, 1.0")
    I(f"v_mov_b32 v{DEN}, 0")
    for r in range(4): I(f"v_mov_b32 v{ACC+r}, 0")
    I(f"s_mov_b32 s52, {f2u(c1):#x}"); I(f"s_mov_b32 s53, {f2u(ism):#x}"); I(f"s_mov_b32 s54, {f2u(1e-6):#x}")
    I("s_mov_b32 s74, 0x07060302")
    I("s_add_u32 s36, s12, s55"); I("s_addc_u32 s37, s13, 0"); I("s_movk_i32 s38, 256"); I("s_mov_b32 s39, 0x20000")
    if tl:
        I(f"v_and_b32 v{TLL}, 63, v0"); I(f"v_mov_b32 v{TLV}, 0"); I("s_mov_b32 s78, 0")
    I(f"v_mov_b32 v{PAT}, {pattern(l0):#x}"); I(f"v_mov_b32 v{PRG}, 1")
    if iw:
        for r in range(4): I(f"v_mov_b32 v{PQ+r}, 0")
    I("s_lshl_b32 s18, s70, 2"); I(f"s_add_u32 s18, s18, {CL+16}"); I(f"v_mov_b32 v{CA}, {CL}"); I(f"v_mov_b32 v{VOLP}, s18")
    if pst == 1: I("s_memrealtime s[90:91]")
    if not (np & 8): I(f"s_waitcnt vmcnt({ib-4 if kf else ib})")
    if pst: I("s_memrealtime s[92:93]")
    I("s_barrier")
    if pst: I("s_memrealtime s[94:95]"); I("s_waitcnt lgkmcnt(0)")
    for c in range(4): I(f"ds_read_b128 v[{OM+4*c}:{OM+4*c+3}], v{RA[0]} offset:{64*c}")
    for c in range(4): I(f"ds_read_b128 v[{KR+4*c}:{KR+4*c+3}], v{RA[1]} offset:{2048+64*c}")
    def proj():
        I(f"v_mov_b32 v{N0}, 0"); I(f"v_mov_b32 v{N1}, 0")
        for c in range(4):
            I(f"s_waitcnt lgkmcnt({3-c})")
            srcc = "0" if c == 0 else f"v[{X}:{X+3}]"
            I(f"v_mfma_f32_16x16x32_bf16 v[{X}:{X+3}], v[{OM+4*c}:{OM+4*c+3}], v[{KR+4*c}:{KR+4*c+3}], {srcc}")
            for j in range(4): I(f"v_dot2c_f32_bf16 v{N0+(j&1)}, v{KR+4*c+j}, v{KR+4*c+j}")
        I("s_nop 2")
        I(f"v_add_f32 v{N0}, v{N0}, v{N1}")
        I("s_nop 1")
        I(f"v_mfma_f32_16x16x4_f32 v[{X}:{X+3}], v{CNEG}, v{N0}, v[{X}:{X+3}]")
    if not (np & 8): proj()
    I("s_nop 9")
    I(f"v_mul_f32 v{A0}, s52, v{X}"); I(f"v_mul_f32 v{A1}, s52, v{X+1}")
    I(f"v_exp_f32 v{A0}, v{A0}"); I(f"v_exp_f32 v{A1}, v{A1}")
    I(f"v_mov_b32 v{T0}, s54")
    I(f"v_fma_f32 v{A0}, v{A0}, s53, v{T0}"); I(f"v_fma_f32 v{A1}, v{A1}, s53, v{T0}")
    I(f"v_add_f32 v{BB}, v{A0}, v{A1}"); I(f"v_mul_f32 v{BB}, s54, v{BB}")
    I(f"v_mul_f32 v{A0}, s53, v{A0}"); I(f"v_mul_f32 v{A1}, s53, v{A1}")
    for c in range(ib-4, 4):
        I("s_waitcnt vmcnt(4)"); ld(c)
    nlab = [0]
    def wait(lims, j):
        if j in so:
            nlab[0] += 1
            I(f"s_cmp_ge_u32 s80, {4*(so.index(j)+1)+neg}")
            I(f"s_cbranch_scc1 L_p{nlab[0]}")
            I(f"s_waitcnt vmcnt({lims[j]-1})")
            if neg and so.index(j) == 0:
                I(f"s_cmp_ge_u32 s80, {neg}")
                I(f"s_cbranch_scc1 L_p{nlab[0]}")
                I(f"s_waitcnt vmcnt({lims[j]-2})")
            A(f"L_p{nlab[0]}:")
        else: I(f"s_waitcnt vmcnt({lims[j]-1})")
    def top():
        if tl: I("s_memrealtime s[76:77]")
        if 0 <= enc < 64:
            nlab[0] += 1
            I("s_add_u32 s78, s78, 1"); I(f"s_cmp_lg_u32 s78, {enc+1}"); I(f"s_cbranch_scc1 L_e{nlab[0]}")
            I("s_memrealtime s[98:99]"); I("s_waitcnt lgkmcnt(0)"); A(f"L_e{nlab[0]}:")
        if iw:
            I(f"v_add3_u32 v{PQ}, v{PQ}, v{PQ+1}, v{PQ+2}")
            I(f"v_mad_i32_i24 v{PQ+3}, v{PRG}, -4, v{PQ+3}")
            I(f"v_add3_u32 v{PQ}, v{PQ}, v{PQ+3}, {io}")
            I(f"v_mad_i32_i24 v{PAT}, v{PQ}, {iw}, v{PAT}")
            I(f"v_max_i32 v{PAT}, 0, v{PAT}")
            I(f"v_add_u32 v{PRG}, 1, v{PRG}")
            I(f"v_readfirstlane_b32 s80, v{PAT}")
            I(f"ds_write_b32 v{VOLP}, v{PRG}")
            I(f"ds_read_b32 v{PAT}, v{CA}")
            I(f"ds_read_b128 v[{PQ}:{PQ+3}], v{CA} offset:16")
        else:
            I(f"v_readfirstlane_b32 s80, v{PAT}")
            I(f"v_add_u32 v{PRG}, 1, v{PRG}")
            I(f"ds_read_b32 v{PAT}, v{CA}")
            I(f"ds_write_b32 v{VOLP}, v{PRG}")
        I(f"s_or_b32 s48, s48, {(~tmask) & 0xffffffff:#x}"); I("s_add_u32 s48, s48, 1"); I(f"s_and_b32 s48, s48, {tmask:#x}")
        I("s_add_u32 s73, s73, 0x1000"); I("s_and_b32 s73, s73, 0x3000"); I("s_or_b32 m0, s71, s73"); I("s_xor_b32 s72, m0, 0x2000")
        I("s_lshr_b32 s81, s73, 12"); I("s_add_u32 s80, s80, s81")
        if tl:
            I("s_waitcnt lgkmcnt(0)"); I("s_sub_u32 s76, s76, s60"); I(f"v_mov_b32 v{T1}, s76"); I(f"v_cmp_eq_u32 vcc, s78, v{TLL}"); I("s_add_u32 s78, s78, 1"); I("s_nop 0")
            I(f"v_cndmask_b32 v{TLV}, v{TLV}, v{T1}, vcc")
    def kslot(lims):
        done = []; cur = -99
        for j in range(4):
            cur = max(cur, 8+j-lims[j]-(9 if j in slots else 0)); done.append(cur)
        return min(j for j in range(4) if done[j] >= 3)
    def k_addr():
        I(f"v_add_u32 v{RA[0]}, s72, v{RB}")
        for c in range(1,4): I(f"v_xor_b32 v{RA[c]}, {64*c}, v{RA[0]}")
    def k_read():
        for c in range(4): I(f"ds_read_b128 v[{KR+4*c}:{KR+4*c+3}], v{RA[c]}")
    def k_exp():
        I("s_nop 7")
        I(f"v_mul_f32 v{T0}, s52, v{X}"); I(f"v_mul_f32 v{T1}, s52, v{X+1}")
        I(f"v_exp_f32 v{T0}, v{T0}"); I(f"v_exp_f32 v{T1}, v{T1}")
        I("s_nop 0")
        I(f"v_fma_f32 v{T0}, v{A0}, v{T0}, v{BB}"); I(f"v_fma_f32 v{T0}, v{A1}, v{T1}, v{T0}")
        I(f"v_add_f32 v{DEN}, v{DEN}, v{T0}")
        I("s_nop 0")
        I(f"v_mfma_f32_16x16x4_f32 v[{W}:{W+3}], v{ONE}, v{T0}, 0")
    def k_pack():
        I("s_nop 7")
        I(f"v_and_b32 v{T0}, 0xffff0000, v{W}"); I(f"v_sub_f32 v{T0}, v{W}, v{T0}")
        I(f"v_perm_b32 v{T0}, v{W}, v{T0}, s74")
        I("s_mov_b64 exec, 0xffff")
        I(f"ds_write_b32 v{PA}, v{T0}")
        I("s_mov_b64 exec, -1")
        I(f"v_add_u32 v{PA}, 64, v{PA}")
    ks = kslot(klims)
    sched = {0: [k_read], 1: [proj], 2: [k_exp], 3: [k_pack]} if ks == 0 else {0: [], 1: [k_read, proj], 2: [k_exp], 3: [k_pack]}
    assert ks <= 1
    if sb: I("s_mov_b32 s86, 0")
    if enc >= 0: I("s_mov_b32 s78, 0")
    A("L_kloop:")
    top()
    I("s_cmp_lg_u32 s48, 0x100000")
    I("s_cbranch_scc1 L_kgo")
    I("s_mov_b32 s48, 0"); I("s_mov_b32 s20, s24"); I("s_mov_b32 s21, s25")
    for c in range(4): I(f"v_mov_b32 v{VO[c]}, v{VOL}")
    if sb: I(f"s_mov_b32 s86, {sb}")
    A("L_kgo:")
    if sb: I("s_max_u32 s80, s80, s86")
    wrot()
    k_addr()
    for j in range(4):
        wait(klims, j); ld(j)
        for f in sched[j]: f()
    I(f"s_cmp_lg_u32 s48, {t1:#x}")
    I("s_cbranch_scc1 L_kloop")
    def p_read():
        I(f"ds_read_b128 v[{W}:{W+3}], v{PA}")
        I(f"v_add_u32 v{PA}, 64, v{PA}")
    def perms(rs, w=True):
        if w: I("s_waitcnt lgkmcnt(0)")
        for r in rs:
            for q in range(4): I(f"v_perm_b32 v{OM+4*r+q}, v{W+r}, v{W+r}, v{SEL[q]}")
    A("L_switch:")
    I(f"v_bfe_u32 v{T0}, v0, 4, 2")
    I(f"v_lshl_add_u32 v{PA}, v{T0}, 4, s59")
    p_read()
    for sh in (8,4,2,1):
        I(f"v_add_f32 v{DEN}, v{DEN}, v{DEN} row_ror:{sh}"); I("s_nop 1")
    I(f"v_mfma_f32_16x16x4_f32 v[{X}:{X+3}], v{ONE}, v{DEN}, 0")
    perms(range(4))
    I("s_lshl_b32 s18, s70, 2"); I(f"s_add_u32 s18, s18, {DL}"); I(f"v_mov_b32 v{T0}, s18")
    I("s_mov_b64 exec, 1")
    I(f"ds_write_b32 v{T0}, v{X}")
    I("s_mov_b64 exec, -1")
    I(f"v_and_b32 v{T0}, 15, v0"); I(f"v_lshl_add_u32 v{RA[1]}, v{T0}, 5, s59"); I(f"v_bfe_u32 v{T0}, v0, 4, 1"); I(f"v_lshl_add_u32 v{RA[1]}, v{T0}, 4, v{RA[1]}")
    I(f"v_bfe_u32 v{T0}, v0, 5, 1"); I(f"v_lshl_add_u32 v{RA[1]}, v{T0}, 9, v{RA[1]}")
    I(f"s_mov_b32 s18, {PL}"); I(f"v_lshl_add_u32 v{RA[2]}, v0, 2, s18"); I(f"v_mov_b32 v{RA[3]}, {DL}")
    I(f"v_lshlrev_b32 v{A0}, 3, v0"); I(f"v_lshlrev_b32 v{A1}, 1, v0")
    vs = kslot(vlims)
    assert vs <= 1
    def v_mm():
        for r in range(4): I(f"ds_read_b128 v[{KR+4*r}:{KR+4*r+3}], v{RA[0]} offset:{1024*r}")
        for r in range(4):
            I(f"s_waitcnt lgkmcnt({3-r})")
            I(f"v_mfma_f32_16x16x32_bf16 v[{ACC}:{ACC+3}], v[{OM+4*r}:{OM+4*r+3}], v[{KR+4*r}:{KR+4*r+3}], v[{ACC}:{ACC+3}]")
        I(f"s_cmp_eq_u32 s48, {0x100000+t1:#x}")
        I("s_cbranch_scc1 L_done")
    if vs == 0: sched = {0: [v_mm], 1: [p_read], 2: [lambda: perms([0,1])], 3: [lambda: perms([2,3], False)]}
    else: sched = {0: [], 1: [v_mm, p_read], 2: [lambda: perms([0,1])], 3: [lambda: perms([2,3], False)]}
    A("L_vloop:")
    top()
    wrot()
    I(f"v_add_u32 v{RA[0]}, s72, v{L16}")
    for j in range(4):
        wait(vlims, j); ld(j)
        for f in sched[j]: f()
    I("s_branch L_vloop")
    A("L_done:")
    if stamps: I("s_memrealtime s[62:63]")
    if enc == 64: I("s_memrealtime s[98:99]")
    if wv:
        I("s_waitcnt lgkmcnt(0)"); I(f"v_mov_b32 v{T1}, s62"); I(f"ds_write_b32 v{VOLP}, v{T1} offset:16")
    if ts: I("s_memtime s[88:89]")
    I("s_nop 4")
    I("s_cmp_ge_u32 s70, 2")
    I(f"ds_write_b128 v{RA[1]}, v[{ACC}:{ACC+3}]")
    I("s_waitcnt lgkmcnt(0)")
    I("s_barrier")
    I("s_cbranch_scc1 L_end")
    if ts: I("s_memtime s[90:91]")
    for w in range(4): I(f"ds_read2st64_b32 v[{40+2*w}:{41+2*w}], v{RA[2]} offset0:{8*w} offset1:{8*w+2}")
    I(f"ds_read_b128 v[48:51], v{RA[3]}")
    I("s_waitcnt lgkmcnt(0)")
    I("v_pk_add_f32 v[40:41], v[40:41], v[42:43]"); I("v_pk_add_f32 v[44:45], v[44:45], v[46:47]")
    I("v_pk_add_f32 v[48:49], v[48:49], v[50:51]"); I("v_pk_add_f32 v[40:41], v[40:41], v[44:45]")
    I("v_add_f32 v43, v48, v49"); I("v_add_f32 v42, v40, v41")
    I("v_and_b32 v41, 0x7fffffff, v43"); I("v_mov_b32 v40, v42")
    if ts: I("s_memtime s[92:93]")
    I(f"buffer_atomic_swap_x2 v[40:41], v{A0}, s[44:47], 0 offen sc0")
    I("s_waitcnt vmcnt(0)")
    if ts: I("s_memtime s[94:95]")
    I("v_cmp_le_i32 vcc, 0, v41")
    I("s_and_saveexec_b64 s[56:57], vcc")
    I("s_cbranch_execz L_fin")
    I("v_add_f32 v43, v43, v41"); I("v_add_f32 v43, s54, v43"); I("v_rcp_f32 v44, v43"); I("v_add_f32 v42, v42, v40")
    I("v_fma_f32 v45, -v43, v44, 1.0"); I("v_fma_f32 v44, v45, v44, v44")
    I("v_mul_f32 v42, v42, v44")
    I("v_cvt_pk_bf16_f32 v42, v42, v42")
    I(f"buffer_store_short v42, v{A1}, s[36:39], 0 offen {oflags}")
    A("L_fin:")
    if fixed or stamps:
        I("s_mov_b64 exec, -1")
        I("s_cmp_lg_u32 s70, 0"); I("s_cbranch_scc1 L_end")
    if enc >= 0:
        if enc == 65: I("s_memrealtime s[98:99]")
        if enc >= 70: I(f"s_mov_b32 s98, s{88+2*(enc-70)}")
        I("s_waitcnt lgkmcnt(0)")
        I("s_sub_u32 s98, s98, s60")
        for lab, t in (("L_s1", 5500), ("L_s2", 7000)):
            A(lab+":")
            I("s_memrealtime s[68:69]"); I("s_waitcnt lgkmcnt(0)"); I("s_sub_u32 s68, s68, s60")
            I(f"s_cmp_lt_u32 s68, {t}"); I(f"s_cbranch_scc1 {lab}")
            if lab == "L_s1":
                if em == 'G':
                    I("s_and_b32 s99, s60, 0xfffff"); I("s_add_u32 s98, s98, s99"); I("s_atomic_add s99, s[14:15], 96")
                I(("s_atomic_add" if em == 's' else "s_atomic_umax") + " s98, s[14:15], 32"); I("s_waitcnt lgkmcnt(0)")
        I("s_mov_b32 s98, 0"); I("s_atomic_or s98, s[14:15], 32 glc"); I("s_waitcnt lgkmcnt(0)")
        if em == 'G':
            I("s_mov_b32 s99, 0"); I("s_atomic_or s99, s[14:15], 96 glc"); I("s_waitcnt lgkmcnt(0)"); I("s_lshr_b32 s99, s99, 8"); I("s_sub_u32 s98, s98, s99")
        I("s_mul_i32 s98, s98, 10")
        if em == 's': I("s_lshr_b32 s98, s98, 8")
        I(f"s_sub_i32 s98, s98, {eo*1000}"); I("s_max_i32 s98, s98, 0"); I("s_min_i32 s98, s98, 15000")
        I("s_add_u32 s60, s60, s98")
    if fixed:
        A("L_spin:")
        I("s_memrealtime s[68:69]"); I("s_waitcnt lgkmcnt(0)"); I("s_sub_u32 s68, s68, s60")
        I(f"s_cmp_lt_i32 s68, {fixed*100}"); I("s_cbranch_scc1 L_spin")
    if stamps:
        if ts:
            I("s_waitcnt vmcnt(0)"); I("s_memtime s[96:97]")
        I("s_memrealtime s[64:65]")
        I("s_getreg_b32 s66, hwreg(HW_REG_XCC_ID)"); I("s_getreg_b32 s67, hwreg(HW_REG_HW_ID)")
        I("s_waitcnt lgkmcnt(0)")
        I("s_mov_b32 s61, 0"); I("s_sub_u32 s63, s64, s62")
        if wv:
            I(f"ds_read_b128 v[40:43], v{CA} offset:32"); I("s_waitcnt lgkmcnt(0)")
            for r in range(4): I(f"v_readfirstlane_b32 s{88+2*r}, v{40+r}")
            I("s_nop 1")
            for r in (88,90,92,94): I(f"s_sub_u32 s{r}, s64, s{r}")
            I("s_pack_ll_b32_b16 s61, s88, s90"); I("s_pack_ll_b32_b16 s65, s92, s94")
        if pst:
            for r in (88,90,92,94): I(f"s_sub_u32 s{r}, s{r}, s60")
            I("s_pack_ll_b32_b16 s61, s88, s90"); I("s_pack_ll_b32_b16 s65, s92, s94")
        if ts:
            I("s_sub_u32 s96, s96, s94"); I("s_sub_u32 s94, s94, s92"); I("s_sub_u32 s92, s92, s90"); I("s_sub_u32 s90, s90, s88")
            I("s_pack_ll_b32_b16 s61, s90, s92"); I("s_pack_ll_b32_b16 s65, s94, s96")
        for j in range(8): I(f"v_mov_b32 v{20+j}, s{60+j}")
        I("s_add_u32 s44, s16, 0x100000"); I("s_addc_u32 s45, s17, 0"); I("s_mov_b32 s46, 0x100000")
        if tl:
            I("s_lshl_b32 s55, s2, 8"); I("s_add_u32 s55, s55, 0x80000"); I(f"v_lshlrev_b32 v{TLL}, 2, v{TLL}")
            I(f"buffer_store_dword v{TLV}, v{TLL}, s[44:47], s55 offen")
        I("s_lshl_b32 s55, s2, 5"); I("v_mov_b32 v14, 0"); I("s_mov_b64 exec, 1")
        I("buffer_store_dwordx4 v[20:23], v14, s[44:47], s55 offen")
        I("buffer_store_dwordx4 v[24:27], v14, s[44:47], s55 offen offset:16")
    A("L_end:")
    I("s_endpgm")
    A("L_helper:")
    I(f"v_mov_b32 v1, {CL}"); I(f"v_mov_b32 v2, {pattern(l0):#x}")
    for r in range(4): I(f"v_mov_b32 v{4+r}, 1")
    I("ds_write_b32 v1, v2"); I("ds_write_b128 v1, v[4:7] offset:16")
    I(f"s_add_u32 s16, s16, {CB:#x}"); I("s_addc_u32 s17, s17, 0")
    I("s_waitcnt lgkmcnt(0)")
    I("s_barrier")
    I(f"s_cmp_ge_u32 s2, {8*len(cpl)}")
    I("s_cbranch_scc1 L_h1")
    I("s_lshl_b32 s18, s2, 8"); I("s_mov_b32 s20, 0")
    I("s_atomic_swap s20, s[16:17], s18")
    A("L_h1:")
    I(f"s_andn2_b32 s56, s50, {(agg-1)*8}")
    I("s_lshl_b32 s57, 1, s56"); I("s_lshr_b32 s56, s56, 5"); I("s_lshl_b32 s56, s56, 6")
    I("s_cmp_lg_u32 s19, 0")
    I("s_cbranch_scc1 L_h2")
    I("s_waitcnt vmcnt(0)")
    I("s_atomic_or s57, s[14:15], s56")
    A("L_h2:")
    if cw:
        I(f"s_sleep {cw}")
        I("s_getpc_b64 s[24:25]")
        A("L_pc:")
        I("s_sub_u32 s24, s24, L_pc-L_switch"); I("s_subb_u32 s25, s25, 0")
        for j in range(9): I(f"s_load_dword s{26+j}, s[24:25], {128*j}")
    if hop:
        I(f"s_sleep {hop}")
        I("s_mov_b64 exec, 0")
        I("s_branch L_hop0")
        A("L_hopend:")
        I("s_mov_b64 exec, -1")
    if tw:
        I("s_lshl_b32 s18, s50, 20"); I("s_add_u32 s8, s8, s18"); I("s_addc_u32 s9, s9, 0"); I("s_lshl_b32 s18, s50, 8")
        I("s_sleep 64")
        if tw & 1: I("s_load_dword s21, s[8:9], 0")
        if tw & 2: I("s_load_dword s22, s[12:13], s18")
    I("s_bfe_u32 s52, s2, 0x30003"); I("s_lshl_b32 s52, s52, 8")
    for i in range(4): I(f"s_mov_b32 s{80+i}, {sum(lvn[8*i+j] << (4*j) for j in range(8)):#x}")
    cm = sum(1 << x for x in cpl)
    I(f"s_mov_b32 s84, {cm & 0xffffffff:#x}"); I(f"s_mov_b32 s85, {cm >> 32:#x}")
    A("L_hl:")
    I("s_ff1_i32_b64 s53, s[84:85]")
    I("s_cmp_lt_i32 s53, 0")
    I("s_cbranch_scc1 L_hf")
    I("s_bitset0_b64 s[84:85], s53")
    I("s_lshl_b32 s53, s53, 2")
    A("L_hp:")
    I(f"s_sleep {slp}"); I("ds_read_b128 v[4:7], v1 offset:16"); I("s_waitcnt lgkmcnt(0)")
    I("v_add_u32 v4, v4, v5"); I("v_add3_u32 v4, v4, v6, v7"); I("s_nop 0"); I("v_readfirstlane_b32 s55, v4"); I("s_nop 1")
    I("s_cmp_lt_u32 s55, s53"); I("s_cbranch_scc1 L_hp")
    I("s_mov_b32 s55, 1"); I("s_atomic_add s55, s[16:17], s52 glc")
    I("s_add_u32 s52, s52, 2048")
    I("s_waitcnt lgkmcnt(0)")
    I("s_bitcmp1_b32 s55, 4"); I("s_cselect_b64 s[58:59], s[82:83], s[80:81]")
    I("s_lshl_b32 s55, s55, 2"); I("s_lshr_b64 s[58:59], s[58:59], s55"); I("s_and_b32 s58, s58, 15")
    I("v_mov_b32 v2, s58"); I("ds_write_b32 v1, v2")
    I("s_branch L_hl")
    A("L_hf:")
    if fchk:
        I("s_load_dword s20, s[14:15], s56")
        A("L_hf1:")
        I("s_waitcnt lgkmcnt(0)")
        I("s_and_b32 s20, s20, s57")
        I("s_cbranch_scc1 L_hx")
        I("s_sleep 16")
        I("s_atomic_or s20, s[14:15], s56 glc")
        I("s_branch L_hf1")
    A("L_hx:")
    if eb:
        I(f"s_sleep {slp}"); I("ds_read_b128 v[4:7], v1 offset:16"); I("s_waitcnt lgkmcnt(0)")
        I("v_add_u32 v4, v4, v5"); I("v_add3_u32 v4, v4, v6, v7"); I("s_nop 0"); I("v_readfirstlane_b32 s55, v4"); I("s_nop 1")
        I(f"s_cmp_lt_u32 s55, {4*eb}"); I("s_cbranch_scc1 L_hx")
        I(f"v_max_u32 v2, {el}, v2"); I("ds_write_b32 v1, v2")
    I("s_endpgm")
    A('.section .rodata,"a"'); A(".p2align 6"); A(f".amdhsa_kernel {NAME}")
    A(f"  .amdhsa_next_free_vgpr {nv}"); A("  .amdhsa_next_free_sgpr 100"); A(f"  .amdhsa_accum_offset {(nv+3)//4*4}")
    A("  .amdhsa_group_segment_fixed_size 0"); A("  .amdhsa_kernarg_size 56"); A("  .amdhsa_user_sgpr_count 2")
    A("  .amdhsa_user_sgpr_kernarg_segment_ptr 1"); A("  .amdhsa_system_sgpr_workgroup_id_x 1")
    A("  .amdhsa_float_denorm_mode_32 3")
    A(".end_amdhsa_kernel")
    if hop: L = add_hops(L)
    return "\n".join(L)+"\n"

if __name__ == "__main__":
    d = sys.argv[1]
    os.makedirs(d, exist_ok=True)
    for spec in sys.argv[2:]:
        kv = {}
        parts = spec.split(",")
        kv['map'] = parts[0]
        for t in parts[1:]:
            k, v = t.split("=")
            kv[k] = v if k in ('klims','vlims','lv','cps','so') else (int(v, 0) if v[0].isdigit() else v.replace("+", " "))
        name = spec.replace("=", "").replace(",", "_")
        open(f"{d}/{name}.s", "w").write(gen(**kv))
```

```python
import sys, struct, math, os
def f2u(x): return struct.unpack('<I', struct.pack('<f', x))[0]
HEADER = """; Kernarg layout for this problem (56 bytes, ptrs only, base s[0:1]):
"""
NAME = "standalone__linear_kernel_rfa__decode_kernel"

def isize(line):
    t = line.split(';')[0].strip()
    if not t or t.endswith(':') or t.startswith('.'): return 0
    import re
    op = t.split()[0]
    if op.startswith(('buffer_','ds_','v_mfma','v_perm','v_fma','v_pk_','v_lshl_add','v_bfe','v_add3','v_mad','v_cvt_pk','s_load','s_atomic','s_mem')): return 8
    if 'row_ror' in t: return 8
    lits = re.findall(r'(?<![\w\[:])(0x[0-9a-fA-F]+|\d+)(?![\w\]:(])', t.split(None,1)[1] if ' ' in t else '')
    if op.startswith(('s_nop','s_waitcnt','s_sleep','s_movk','s_cbranch','s_branch','s_setprio')): return 4
    for x in lits:
        if int(x, 0) > 64: return 8
    return 4
def add_hops(L):
    out = []; on = False; n = 0; acc = 0
    for i, line in enumerate(L):
        if line.startswith('L_switch:'):
            out.append(line); on = True; acc = 99; continue
        if on and line.startswith('L_fin:'):
            on = False
            out.append("    s_branch L_fin")
            out.append(f"L_hop{n}:"); out.append("    s_branch L_hopend")
        if on:
            sz = isize(line)
            if sz and (acc + sz > 56 or ('saveexec' in line and acc + sz + 4 > 56)) and 'saveexec' not in L[i-1]:
                out.append(f"L_hop{n}:"); out.append(f"    s_cbranch_execz L_hop{n+1}"); n += 1; acc = 0
            acc += sz
        out.append(line)
    return out

def gen(map="wwtcttttxxxcccc", klims="5555", vlims="5555", flags="nt", lds=0, stamps=0, fixed=0, tl=0, tag=0, oflags="", par=0,
        ib=8, slp=3, np=0, ts=0, sf='sc0 sc1', qf='', agg=8, lv='0000123456789acf', l0=3, cps='9.18.27.36.44.51.56.60', so='312', fchk=1, neg=2, eb=0, el=12, pst=0, prio=3, wv=0, wr=0, sb=0, tw=0, kf=0, cw=0, hop=0, iw=2, io=2, enc=-1, em='s', eo=0, dg=0):
    if dg: tl = 1
    L = []; A = L.append
    so = [int(c) for c in str(so)]
    slots = so
    lv = str(lv); lv = "".join(ch*(32//len(lv)) for ch in lv)
    lvn = [int(ch, 16) for ch in lv]; assert len(lvn) == 32
    def pattern(l): return l
    cpl = [int(x) for x in str(cps).split('.')]
    assert len(cpl) <= 12
    CB = 0x20000
    def I(s): A("    "+s)
    NW = 4; nwg = 256
    klims = [int(c) for c in str(klims)]; vlims = [int(c) for c in str(vlims)]
    pos = {k: [12+i for i,ch in enumerate(map) if ch == k] for k in "wtxc"}
    assert len(pos['w']) == 2 and len(pos['t']) == 5 and max(pos['w']+pos['t']) < 20
    wgpos = pos['x']+pos['c']
    mem_i = [i for i,p in enumerate(wgpos) if p < 20]
    assert len(mem_i) == 1
    mem_i = mem_i[0]; mem_p = wgpos[mem_i]
    assert map[8:] == 'xxxcccc' and mem_i == 3
    tmask = sum(1 << p for p in pos['t']) | (1 << 20)
    t1 = 1 << pos['t'][0]
    PL = 65536; OML = PL+8192; QL = OML+2048; DL = QL+2048
    CL = DL+32
    lds = max(lds, DL+96)
    scale = 128**-0.25
    c1 = scale*math.log2(math.e); cneg = -0.5*scale; ism = 8**-0.5
    A(HEADER.rstrip())
    A(f"; @launch grid=({nwg},1,1) block=({NW*64+64},1,1) lds={lds}")
    A('.amdgcn_target "amdgcn-amd-amdhsa--gfx950"')
    A(".text"); A(f".globl {NAME}"); A(".p2align 8"); A(f".type {NAME},@function"); A(f"{NAME}:")
    VO = [1,2,3,4]
    VOL = 5
    RA = [6,7,8,9]
    SEL = [10,11,12,13]
    CNEG, ONE = 14, 15
    ACC, X, W = 16, 20, 24
    RB, PA, A0, A1, BB, DEN, N0, N1, T0, T1, PAT, L16 = 28, 29, 30, 31, 32, 33, 34, 35, 36, 37, 38, 39
    OM = 40
    KR = 56
    CA, PRG, VOLP = 72, 73, 74
    PQ = 76
    TLV, TLL = 80, 81
    nv = 82 if tl else (80 if iw else 75)
    I("s_load_dwordx8 s[4:11], s[0:1], 0")
    I("s_load_dwordx4 s[12:15], s[0:1], 32")
    I("s_load_dwordx2 s[16:17], s[0:1], 48")
    if enc >= 0: fixed = 80
    if enc >= 70: pst = 2
    if stamps or fixed: I("s_memrealtime s[60:61]")
    I(f"s_cmp_ge_u32 s2, {nwg}")
    I("s_cbranch_scc1 L_end")
    I("v_subrev_u32 v0, 64, v0")
    I("v_ashrrev_i32 v20, 6, v0")
    I("v_and_b32 v21, 15, v0          ; n")
    I("v_readfirstlane_b32 s70, v20")
    I("v_bfe_u32 v22, v0, 4, 2        ; g")
    if map[8:] == "xxxcccc" and mem_i == 3:
        I("s_and_b32 s50, s2, 7"); I("s_lshr_b32 s18, s2, 4"); I("s_lshl3_add_u32 s50, s18, s50   ; head")
    else:
        I("s_mov_b32 s50, 0")
        for i,p in enumerate(wgpos):
            if i == mem_i: continue
            I(f"s_bfe_u32 s18, s2, {0x10000+i:#x}"); I(f"s_lshl_b32 s18, s18, {p-20}"); I("s_or_b32 s50, s50, s18")
    I(f"s_bfe_u32 s51, s2, {0x10000+mem_i:#x}      ; member")
    I(f"v_and_b32 v{L16}, 63, v0")
    I(f"v_lshlrev_b32 v{L16}, 4, v{L16}      ; lane*16")
    I("s_cmp_ge_i32 s70, 0")
    I("s_cbranch_scc1 L_stream")
    I("s_lshl_b32 s18, s50, 10")
    I(f"s_mov_b32 s46, {1024+(agg-1)*8192}"); I("s_mov_b32 s47, 0x20000")
    for r in range(4): I(f"v_mov_b32 v{W+r}, -1")
    I(f"s_and_b32 s19, s2, {8 | ((agg-1) << 4)}")
    I("s_waitcnt lgkmcnt(0)")
    I("s_cbranch_scc1 L_h0")
    I("s_add_u32 s44, s16, s18"); I("s_addc_u32 s45, s17, 0")
    if not (np & 1):
        for j in range(agg):
            if j: I(f"s_mov_b32 s18, {8192*j}")
            I(f"buffer_store_dwordx4 v[{W}:{W+3}], v{L16}, s[44:47], {'s18' if j else '0'} offen {sf}")
    A("L_h0:")
    I("s_branch L_helper")
    A("L_stream:")
    if prio: I(f"s_setprio {prio}")
    I(f"s_lshl_b32 s3, s51, {mem_p}")
    if wr:
        assert pos['w'] == [12,13]
        I("s_lshl_b32 s83, s70, 12")
    elif pos['w'] == [12,13]:
        I("s_lshl_b32 s18, s70, 12"); I("s_or_b32 s3, s3, s18")
    else:
        for i,p in enumerate(pos['w']):
            I(f"s_bfe_u32 s18, s70, {0x10000+i:#x}"); I(f"s_lshl_b32 s18, s18, {p}"); I("s_or_b32 s3, s3, s18")
    I(f"v_add_u32 v{VOL}, s3, v{L16}")
    I("v_lshlrev_b32 v23, 6, v22      ; (4g)*16")
    I(f"v_xor_b32 v{VO[0]}, v{VOL}, v23")
    for c in range(1,4): I(f"v_xor_b32 v{VO[c]}, {16*c}, v{VO[0]}")
    I("s_lshl_b32 s71, s70, 14")
    I("s_lshl_b32 s19, s70, 10")
    if kf: I("s_mov_b32 s86, s19")
    I(f"s_add_u32 m0, s19, {OML}")
    I("s_mov_b32 s31, 0x20000"); I("s_movk_i32 s30, 256")
    I("s_lshl_b32 s18, s50, 20")
    I("s_lshl_b32 s55, s50, 8")
    I("s_mov_b32 s22, 0x100000"); I("s_mov_b32 s23, 0x20000")
    I(f"s_mov_b32 s48, {t1:#x}")
    I("s_waitcnt lgkmcnt(0)")
    I("s_add_u32 s4, s4, s55"); I("s_addc_u32 s5, s5, 0")
    I("s_cmp_lt_u32 s70, 2")
    I("s_cselect_b32 s28, s10, s4"); I("s_cselect_b32 s29, s11, s5"); I("s_cselect_b32 s30, 2048, s30"); I("s_cselect_b32 s19, s19, 0")
    if not kf and not (np & 16): I(f"buffer_load_dwordx4 v{L16}, s[28:31], s19 offen {qf} lds")
    if pst: I("s_memrealtime s[88:89]")
    I("s_mov_b32 m0, s71")
    I("s_add_u32 s20, s6, s18"); I("s_addc_u32 s21, s7, 0")
    def ld(c, so=None):
      if so is None: so = "s84" if wr else "s48"
      I(f"buffer_load_dwordx4 v{VO[c]}, s[20:23], {so} offen offset:{1024*c} {flags} lds")
    for c in range(4): ld(c, "s83" if wr else "0")
    if kf:
        I(f"s_add_u32 m0, s86, {OML}"); I("s_nop 0")
        I(f"buffer_load_dwordx4 v{L16}, s[28:31], s19 offen {qf} lds")
    I("s_or_b32 m0, s71, 0x1000")
    I("s_movk_i32 s73, 0x1000")
    def wrot():
        if wr == 1: I("s_xor_b32 s84, s83, s73"); I("s_or_b32 s84, s84, s48")
        elif wr == 2: I("s_lshr_b32 s84, s48, 4"); I("s_xor_b32 s84, s84, s83"); I("s_and_b32 s84, s84, 0x3000"); I("s_or_b32 s84, s84, s48")
    wrot()
    for c in range(ib-4): ld(c)
    if pst == 2: I("s_memrealtime s[90:91]")
    I("s_add_u32 s24, s8, s18"); I("s_addc_u32 s25, s9, 0")
    I("s_lshl_b32 s56, s50, 10")
    I("s_add_u32 s44, s16, s56"); I("s_addc_u32 s45, s17, 0"); I("s_movk_i32 s46, 1024"); I("s_mov_b32 s47, 0x20000")
    I("v_and_b32 v16, 3, v21"); I("v_lshlrev_b32 v16, 10, v16")
    I("v_lshrrev_b32 v17, 2, v21"); I("v_lshl_add_u32 v16, v17, 8, v16   ; kappa*256")
    I("v_xor_b32 v18, v22, v21"); I(f"v_lshl_add_u32 v{RB}, v18, 4, v16")
    I("v_lshlrev_b32 v17, 1, v17"); I("v_and_b32 v18, 1, v21"); I("v_add_u32 v17, v17, v18   ; m(i)")
    I(f"s_mov_b32 s58, {OML}")
    I(f"v_lshl_add_u32 v{RA[1]}, v22, 4, s58   ; g*16 + OML"); I(f"v_lshl_add_u32 v{RA[0]}, v17, 8, v{RA[1]}")
    I("s_lshl_b32 s59, s70, 11"); I(f"s_add_u32 s59, s59, {PL}")
    I(f"v_lshl_add_u32 v{PA}, v21, 2, s59")
    I("v_cmp_gt_u32 vcc, 8, v21")
    I("v_mov_b32 v16, 0x0100"); I("v_mov_b32 v17, 0x0302")
    I("v_cndmask_b32 v16, v16, v17, vcc")
    I("v_cmp_eq_u32 vcc, 0, v18")
    I("v_or_b32 v17, 0x0c0c0000, v16")
    I("v_lshlrev_b32 v16, 16, v16"); I("v_or_b32 v16, 0x0c0c, v16")
    I("v_cndmask_b32 v16, v16, v17, vcc")
    I("v_bfe_u32 v18, v21, 1, 2")
    I("v_mov_b32 v17, 0x0c0c0c0c")
    for q in range(4):
        I(f"v_cmp_eq_u32 vcc, {q}, v18"); I("s_nop 1"); I(f"v_cndmask_b32 v{SEL[q]}, v17, v16, vcc")
    I(f"v_mov_b32 v{CNEG}, {f2u(cneg):#x}")
    I(f"v_mov_b32 v{ONE}, 1.0")
    I(f"v_mov_b32 v{DEN}, 0")
    for r in range(4): I(f"v_mov_b32 v{ACC+r}, 0")
    I(f"s_mov_b32 s52, {f2u(c1):#x}"); I(f"s_mov_b32 s53, {f2u(ism):#x}"); I(f"s_mov_b32 s54, {f2u(1e-6):#x}")
    I("s_mov_b32 s74, 0x07060302")
    I("s_add_u32 s36, s12, s55"); I("s_addc_u32 s37, s13, 0"); I("s_movk_i32 s38, 256"); I("s_mov_b32 s39, 0x20000")
    if tl:
        I(f"v_and_b32 v{TLL}, 63, v0"); I(f"v_mov_b32 v{TLV}, 0"); I("s_mov_b32 s78, 0")
    I(f"v_mov_b32 v{PAT}, {pattern(l0):#x}"); I(f"v_mov_b32 v{PRG}, 1")
    if iw:
        for r in range(4): I(f"v_mov_b32 v{PQ+r}, 0")
    I("s_lshl_b32 s18, s70, 2"); I(f"s_add_u32 s18, s18, {CL+16}"); I(f"v_mov_b32 v{CA}, {CL}"); I(f"v_mov_b32 v{VOLP}, s18")
    if pst == 1: I("s_memrealtime s[90:91]")
    if not (np & 8): I(f"s_waitcnt vmcnt({ib-4 if kf else ib})")
    if pst: I("s_memrealtime s[92:93]")
    I("s_barrier")
    if pst: I("s_memrealtime s[94:95]"); I("s_waitcnt lgkmcnt(0)")
    for c in range(4): I(f"ds_read_b128 v[{OM+4*c}:{OM+4*c+3}], v{RA[0]} offset:{64*c}")
    for c in range(4): I(f"ds_read_b128 v[{KR+4*c}:{KR+4*c+3}], v{RA[1]} offset:{2048+64*c}")
    def proj():
        I(f"v_mov_b32 v{N0}, 0"); I(f"v_mov_b32 v{N1}, 0")
        for c in range(4):
            I(f"s_waitcnt lgkmcnt({3-c})")
            srcc = "0" if c == 0 else f"v[{X}:{X+3}]"
            I(f"v_mfma_f32_16x16x32_bf16 v[{X}:{X+3}], v[{OM+4*c}:{OM+4*c+3}], v[{KR+4*c}:{KR+4*c+3}], {srcc}")
            for j in range(4): I(f"v_dot2c_f32_bf16 v{N0+(j&1)}, v{KR+4*c+j}, v{KR+4*c+j}")
        I("s_nop 2")
        I(f"v_add_f32 v{N0}, v{N0}, v{N1}")
        I("s_nop 1")
        I(f"v_mfma_f32_16x16x4_f32 v[{X}:{X+3}], v{CNEG}, v{N0}, v[{X}:{X+3}]")
    if not (np & 8): proj()
    I("s_nop 9")
    I(f"v_mul_f32 v{A0}, s52, v{X}"); I(f"v_mul_f32 v{A1}, s52, v{X+1}")
    I(f"v_exp_f32 v{A0}, v{A0}"); I(f"v_exp_f32 v{A1}, v{A1}")
    I(f"v_mov_b32 v{T0}, s54")
    I(f"v_fma_f32 v{A0}, v{A0}, s53, v{T0}"); I(f"v_fma_f32 v{A1}, v{A1}, s53, v{T0}")
    I(f"v_add_f32 v{BB}, v{A0}, v{A1}"); I(f"v_mul_f32 v{BB}, s54, v{BB}")
    I(f"v_mul_f32 v{A0}, s53, v{A0}"); I(f"v_mul_f32 v{A1}, s53, v{A1}")
    for c in range(ib-4, 4):
        I("s_waitcnt vmcnt(4)"); ld(c)
    nlab = [0]
    def wait(lims, j):
        if j in so:
            nlab[0] += 1
            I(f"s_cmp_ge_u32 s80, {4*(so.index(j)+1)+neg}")
            I(f"s_cbranch_scc1 L_p{nlab[0]}")
            I(f"s_waitcnt vmcnt({lims[j]-1})")
            if neg and so.index(j) == 0:
                I(f"s_cmp_ge_u32 s80, {neg}")
                I(f"s_cbranch_scc1 L_p{nlab[0]}")
                I(f"s_waitcnt vmcnt({lims[j]-2})")
            A(f"L_p{nlab[0]}:")
        else: I(f"s_waitcnt vmcnt({lims[j]-1})")
    def top():
        if tl: I("s_memrealtime s[76:77]")
        if 0 <= enc < 64:
            nlab[0] += 1
            I("s_add_u32 s78, s78, 1"); I(f"s_cmp_lg_u32 s78, {enc+1}"); I(f"s_cbranch_scc1 L_e{nlab[0]}")
            I("s_memrealtime s[98:99]"); I("s_waitcnt lgkmcnt(0)"); A(f"L_e{nlab[0]}:")
        if iw:
            I(f"v_add3_u32 v{PQ}, v{PQ}, v{PQ+1}, v{PQ+2}")
            I(f"v_mad_i32_i24 v{PQ+3}, v{PRG}, -4, v{PQ+3}")
            I(f"v_add3_u32 v{PQ}, v{PQ}, v{PQ+3}, {io}")
            I(f"v_mad_i32_i24 v{PAT}, v{PQ}, {iw}, v{PAT}")
            I(f"v_max_i32 v{PAT}, 0, v{PAT}")
            I(f"v_add_u32 v{PRG}, 1, v{PRG}")
            I(f"v_readfirstlane_b32 s80, v{PAT}")
            I(f"ds_write_b32 v{VOLP}, v{PRG}")
            I(f"ds_read_b32 v{PAT}, v{CA}")
            I(f"ds_read_b128 v[{PQ}:{PQ+3}], v{CA} offset:16")
        else:
            I(f"v_readfirstlane_b32 s80, v{PAT}")
            I(f"v_add_u32 v{PRG}, 1, v{PRG}")
            I(f"ds_read_b32 v{PAT}, v{CA}")
            I(f"ds_write_b32 v{VOLP}, v{PRG}")
        I(f"s_or_b32 s48, s48, {(~tmask) & 0xffffffff:#x}"); I("s_add_u32 s48, s48, 1"); I(f"s_and_b32 s48, s48, {tmask:#x}")
        I("s_add_u32 s73, s73, 0x1000"); I("s_and_b32 s73, s73, 0x3000"); I("s_or_b32 m0, s71, s73"); I("s_xor_b32 s72, m0, 0x2000")
        I("s_lshr_b32 s81, s73, 12"); I("s_add_u32 s80, s80, s81")
        if tl:
            I("s_waitcnt lgkmcnt(0)"); I("s_sub_u32 s76, s76, s60"); I(f"v_mov_b32 v{T1}, s76"); I(f"v_cmp_eq_u32 vcc, s78, v{TLL}"); I("s_add_u32 s78, s78, 1"); I("s_nop 0")
            I(f"v_cndmask_b32 v{TLV}, v{TLV}, v{T1}, vcc")
    def kslot(lims):
        done = []; cur = -99
        for j in range(4):
            cur = max(cur, 8+j-lims[j]-(9 if j in slots else 0)); done.append(cur)
        return min(j for j in range(4) if done[j] >= 3)
    def k_addr():
        I(f"v_add_u32 v{RA[0]}, s72, v{RB}")
        for c in range(1,4): I(f"v_xor_b32 v{RA[c]}, {64*c}, v{RA[0]}")
    def k_read():
        for c in range(4): I(f"ds_read_b128 v[{KR+4*c}:{KR+4*c+3}], v{RA[c]}")
    def k_exp():
        I("s_nop 7")
        I(f"v_mul_f32 v{T0}, s52, v{X}"); I(f"v_mul_f32 v{T1}, s52, v{X+1}")
        I(f"v_exp_f32 v{T0}, v{T0}"); I(f"v_exp_f32 v{T1}, v{T1}")
        I("s_nop 0")
        I(f"v_fma_f32 v{T0}, v{A0}, v{T0}, v{BB}"); I(f"v_fma_f32 v{T0}, v{A1}, v{T1}, v{T0}")
        I(f"v_add_f32 v{DEN}, v{DEN}, v{T0}")
        I("s_nop 0")
        I(f"v_mfma_f32_16x16x4_f32 v[{W}:{W+3}], v{ONE}, v{T0}, 0")
    def k_pack():
        I("s_nop 7")
        I(f"v_and_b32 v{T0}, 0xffff0000, v{W}"); I(f"v_sub_f32 v{T0}, v{W}, v{T0}")
        I(f"v_perm_b32 v{T0}, v{W}, v{T0}, s74")
        I("s_mov_b64 exec, 0xffff")
        I(f"ds_write_b32 v{PA}, v{T0}")
        I("s_mov_b64 exec, -1")
        I(f"v_add_u32 v{PA}, 64, v{PA}")
    ks = kslot(klims)
    sched = {0: [k_read], 1: [proj], 2: [k_exp], 3: [k_pack]} if ks == 0 else {0: [], 1: [k_read, proj], 2: [k_exp], 3: [k_pack]}
    assert ks <= 1
    if sb: I("s_mov_b32 s86, 0")
    if enc >= 0: I("s_mov_b32 s78, 0")
    A("L_kloop:")
    top()
    I("s_cmp_lg_u32 s48, 0x100000")
    I("s_cbranch_scc1 L_kgo")
    I("s_mov_b32 s48, 0"); I("s_mov_b32 s20, s24"); I("s_mov_b32 s21, s25")
    for c in range(4): I(f"v_mov_b32 v{VO[c]}, v{VOL}")
    if sb: I(f"s_mov_b32 s86, {sb}")
    A("L_kgo:")
    if sb: I("s_max_u32 s80, s80, s86")
    wrot()
    k_addr()
    for j in range(4):
        wait(klims, j); ld(j)
        for f in sched[j]: f()
    I(f"s_cmp_lg_u32 s48, {t1:#x}")
    I("s_cbranch_scc1 L_kloop")
    def p_read():
        I(f"ds_read_b128 v[{W}:{W+3}], v{PA}")
        I(f"v_add_u32 v{PA}, 64, v{PA}")
    def perms(rs, w=True):
        if w: I("s_waitcnt lgkmcnt(0)")
        for r in rs:
            for q in range(4): I(f"v_perm_b32 v{OM+4*r+q}, v{W+r}, v{W+r}, v{SEL[q]}")
    A("L_switch:")
    I(f"v_bfe_u32 v{T0}, v0, 4, 2")
    I(f"v_lshl_add_u32 v{PA}, v{T0}, 4, s59")
    p_read()
    for sh in (8,4,2,1):
        I(f"v_add_f32 v{DEN}, v{DEN}, v{DEN} row_ror:{sh}"); I("s_nop 1")
    I(f"v_mfma_f32_16x16x4_f32 v[{X}:{X+3}], v{ONE}, v{DEN}, 0")
    perms(range(4))
    I("s_lshl_b32 s18, s70, 2"); I(f"s_add_u32 s18, s18, {DL}"); I(f"v_mov_b32 v{T0}, s18")
    I("s_mov_b64 exec, 1")
    I(f"ds_write_b32 v{T0}, v{X}")
    I("s_mov_b64 exec, -1")
    I(f"v_and_b32 v{T0}, 15, v0"); I(f"v_lshl_add_u32 v{RA[1]}, v{T0}, 5, s59"); I(f"v_bfe_u32 v{T0}, v0, 4, 1"); I(f"v_lshl_add_u32 v{RA[1]}, v{T0}, 4, v{RA[1]}")
    I(f"v_bfe_u32 v{T0}, v0, 5, 1"); I(f"v_lshl_add_u32 v{RA[1]}, v{T0}, 9, v{RA[1]}")
    I(f"s_mov_b32 s18, {PL}"); I(f"v_lshl_add_u32 v{RA[2]}, v0, 2, s18"); I(f"v_mov_b32 v{RA[3]}, {DL}")
    I(f"v_lshlrev_b32 v{A0}, 3, v0"); I(f"v_lshlrev_b32 v{A1}, 1, v0")
    vs = kslot(vlims)
    assert vs <= 1
    def v_mm():
        for r in range(4): I(f"ds_read_b128 v[{KR+4*r}:{KR+4*r+3}], v{RA[0]} offset:{1024*r}")
        for r in range(4):
            I(f"s_waitcnt lgkmcnt({3-r})")
            I(f"v_mfma_f32_16x16x32_bf16 v[{ACC}:{ACC+3}], v[{OM+4*r}:{OM+4*r+3}], v[{KR+4*r}:{KR+4*r+3}], v[{ACC}:{ACC+3}]")
        I(f"s_cmp_eq_u32 s48, {0x100000+t1:#x}")
        I("s_cbranch_scc1 L_done")
    if vs == 0: sched = {0: [v_mm], 1: [p_read], 2: [lambda: perms([0,1])], 3: [lambda: perms([2,3], False)]}
    else: sched = {0: [], 1: [v_mm, p_read], 2: [lambda: perms([0,1])], 3: [lambda: perms([2,3], False)]}
    A("L_vloop:")
    top()
    wrot()
    I(f"v_add_u32 v{RA[0]}, s72, v{L16}")
    for j in range(4):
        wait(vlims, j); ld(j)
        for f in sched[j]: f()
    I("s_branch L_vloop")
    A("L_done:")
    if stamps: I("s_memrealtime s[62:63]")
    if enc == 64: I("s_memrealtime s[98:99]")
    if wv:
        I("s_waitcnt lgkmcnt(0)"); I(f"v_mov_b32 v{T1}, s62"); I(f"ds_write_b32 v{VOLP}, v{T1} offset:16")
    if ts: I("s_memtime s[88:89]")
    I("s_nop 4")
    I("s_cmp_ge_u32 s70, 2")
    I(f"ds_write_b128 v{RA[1]}, v[{ACC}:{ACC+3}]")
    I("s_waitcnt lgkmcnt(0)")
    I("s_barrier")
    I("s_cbranch_scc1 L_end")
    if ts: I("s_memtime s[90:91]")
    for w in range(4): I(f"ds_read2st64_b32 v[{40+2*w}:{41+2*w}], v{RA[2]} offset0:{8*w} offset1:{8*w+2}")
    I(f"ds_read_b128 v[48:51], v{RA[3]}")
    I("s_waitcnt lgkmcnt(0)")
    I("v_pk_add_f32 v[40:41], v[40:41], v[42:43]"); I("v_pk_add_f32 v[44:45], v[44:45], v[46:47]")
    I("v_pk_add_f32 v[48:49], v[48:49], v[50:51]"); I("v_pk_add_f32 v[40:41], v[40:41], v[44:45]")
    I("v_add_f32 v43, v48, v49"); I("v_add_f32 v42, v40, v41")
    I("v_and_b32 v41, 0x7fffffff, v43"); I("v_mov_b32 v40, v42")
    if ts: I("s_memtime s[92:93]")
    I(f"buffer_atomic_swap_x2 v[40:41], v{A0}, s[44:47], 0 offen sc0")
    I("s_waitcnt vmcnt(0)")
    if ts: I("s_memtime s[94:95]")
    I("v_cmp_le_i32 vcc, 0, v41")
    I("s_and_saveexec_b64 s[56:57], vcc")
    I("s_cbranch_execz L_fin")
    I("v_add_f32 v43, v43, v41"); I("v_add_f32 v43, s54, v43"); I("v_rcp_f32 v44, v43"); I("v_add_f32 v42, v42, v40")
    I("v_fma_f32 v45, -v43, v44, 1.0"); I("v_fma_f32 v44, v45, v44, v44")
    I("v_mul_f32 v42, v42, v44")
    I("v_cvt_pk_bf16_f32 v42, v42, v42")
    I(f"buffer_store_short v42, v{A1}, s[36:39], 0 offen {oflags}")
    A("L_fin:")
    if fixed or stamps:
        I("s_mov_b64 exec, -1")
        I("s_cmp_lg_u32 s70, 0"); I("s_cbranch_scc1 L_end")
    if enc >= 0:
        if enc == 65: I("s_memrealtime s[98:99]")
        if enc >= 70: I(f"s_mov_b32 s98, s{88+2*(enc-70)}")
        I("s_waitcnt lgkmcnt(0)")
        I("s_sub_u32 s98, s98, s60")
        for lab, t in (("L_s1", 5500), ("L_s2", 7000)):
            A(lab+":")
            I("s_memrealtime s[68:69]"); I("s_waitcnt lgkmcnt(0)"); I("s_sub_u32 s68, s68, s60")
            I(f"s_cmp_lt_u32 s68, {t}"); I(f"s_cbranch_scc1 {lab}")
            if lab == "L_s1":
                if dg:
                    I("s_mov_b32 s40, s14"); I("s_mov_b32 s41, s15"); I("s_movk_i32 s42, 256"); I("s_mov_b32 s43, 0x20000")
                    I(f"v_lshrrev_b32 v{TLL}, 4, v{TLL}"); I(f"v_lshlrev_b32 v{TLL}, 2, v{TLL}")
                    I("s_mov_b32 exec_lo, 0x40004000"); I("s_mov_b32 exec_hi, 0x40004000")
                    I(f"buffer_atomic_add v{TLV}, v{TLL}, s[40:43], 0 offen offset:8")
                    I("s_cmp_lg_u32 s2, 0"); I("s_cbranch_scc1 L_dg1")
                    I("s_mov_b64 exec, 1")
                    I("v_mov_b32 v24, s6"); I("v_mov_b32 v25, s8"); I("v_mov_b32 v26, s16"); I("v_mov_b32 v27, s7")
                    I("buffer_store_dwordx4 v[24:27], off, s[40:43], 0 offset:48")
                    A("L_dg1:")
                    I("s_mov_b64 exec, -1")
                if em == 'G':
                    I("s_and_b32 s99, s60, 0xfffff"); I("s_add_u32 s98, s98, s99"); I("s_atomic_add s99, s[14:15], 36")
                I(("s_atomic_add" if em == 's' else "s_atomic_umax") + " s98, s[14:15], 32"); I("s_waitcnt lgkmcnt(0)")
        I("s_mov_b32 s98, 0"); I("s_atomic_or s98, s[14:15], 32 glc"); I("s_waitcnt lgkmcnt(0)")
        if em == 'G':
            I("s_mov_b32 s99, 0"); I("s_atomic_or s99, s[14:15], 36 glc"); I("s_waitcnt lgkmcnt(0)"); I("s_lshr_b32 s99, s99, 8"); I("s_sub_u32 s98, s98, s99")
        I("s_mul_i32 s98, s98, 10")
        if em == 's': I("s_lshr_b32 s98, s98, 8")
        I(f"s_sub_i32 s98, s98, {eo*1000}"); I("s_max_i32 s98, s98, 0"); I("s_min_i32 s98, s98, 15000")
        I("s_add_u32 s60, s60, s98")
    if fixed:
        A("L_spin:")
        I("s_memrealtime s[68:69]"); I("s_waitcnt lgkmcnt(0)"); I("s_sub_u32 s68, s68, s60")
        I(f"s_cmp_lt_i32 s68, {fixed*100}"); I("s_cbranch_scc1 L_spin")
    if stamps:
        if ts:
            I("s_waitcnt vmcnt(0)"); I("s_memtime s[96:97]")
        I("s_memrealtime s[64:65]")
        I("s_getreg_b32 s66, hwreg(HW_REG_XCC_ID)"); I("s_getreg_b32 s67, hwreg(HW_REG_HW_ID)")
        I("s_waitcnt lgkmcnt(0)")
        I("s_mov_b32 s61, 0"); I("s_sub_u32 s63, s64, s62")
        if wv:
            I(f"ds_read_b128 v[40:43], v{CA} offset:32"); I("s_waitcnt lgkmcnt(0)")
            for r in range(4): I(f"v_readfirstlane_b32 s{88+2*r}, v{40+r}")
            I("s_nop 1")
            for r in (88,90,92,94): I(f"s_sub_u32 s{r}, s64, s{r}")
            I("s_pack_ll_b32_b16 s61, s88, s90"); I("s_pack_ll_b32_b16 s65, s92, s94")
        if pst:
            for r in (88,90,92,94): I(f"s_sub_u32 s{r}, s{r}, s60")
            I("s_pack_ll_b32_b16 s61, s88, s90"); I("s_pack_ll_b32_b16 s65, s92, s94")
        if ts:
            I("s_sub_u32 s96, s96, s94"); I("s_sub_u32 s94, s94, s92"); I("s_sub_u32 s92, s92, s90"); I("s_sub_u32 s90, s90, s88")
            I("s_pack_ll_b32_b16 s61, s90, s92"); I("s_pack_ll_b32_b16 s65, s94, s96")
        for j in range(8): I(f"v_mov_b32 v{20+j}, s{60+j}")
        I("s_add_u32 s44, s16, 0x100000"); I("s_addc_u32 s45, s17, 0"); I("s_mov_b32 s46, 0x100000")
        if tl:
            I("s_lshl_b32 s55, s2, 8"); I("s_add_u32 s55, s55, 0x80000"); I(f"v_lshlrev_b32 v{TLL}, 2, v{TLL}")
            I(f"buffer_store_dword v{TLV}, v{TLL}, s[44:47], s55 offen")
        I("s_lshl_b32 s55, s2, 5"); I("v_mov_b32 v14, 0"); I("s_mov_b64 exec, 1")
        I("buffer_store_dwordx4 v[20:23], v14, s[44:47], s55 offen")
        I("buffer_store_dwordx4 v[24:27], v14, s[44:47], s55 offen offset:16")
    A("L_end:")
    I("s_endpgm")
    A("L_helper:")
    I(f"v_mov_b32 v1, {CL}"); I(f"v_mov_b32 v2, {pattern(l0):#x}")
    for r in range(4): I(f"v_mov_b32 v{4+r}, 1")
    I("ds_write_b32 v1, v2"); I("ds_write_b128 v1, v[4:7] offset:16")
    I(f"s_add_u32 s16, s16, {CB:#x}"); I("s_addc_u32 s17, s17, 0")
    I("s_waitcnt lgkmcnt(0)")
    I("s_barrier")
    I(f"s_cmp_ge_u32 s2, {8*len(cpl)}")
    I("s_cbranch_scc1 L_h1")
    I("s_lshl_b32 s18, s2, 8"); I("s_mov_b32 s20, 0")
    I("s_atomic_swap s20, s[16:17], s18")
    A("L_h1:")
    I(f"s_andn2_b32 s56, s50, {(agg-1)*8}")
    I("s_lshl_b32 s57, 1, s56"); I("s_lshr_b32 s56, s56, 5"); I("s_lshl_b32 s56, s56, 6")
    I("s_cmp_lg_u32 s19, 0")
    I("s_cbranch_scc1 L_h2")
    I("s_waitcnt vmcnt(0)")
    I("s_atomic_or s57, s[14:15], s56")
    A("L_h2:")
    if cw:
        I(f"s_sleep {cw}")
        I("s_getpc_b64 s[24:25]")
        A("L_pc:")
        I("s_sub_u32 s24, s24, L_pc-L_switch"); I("s_subb_u32 s25, s25, 0")
        for j in range(9): I(f"s_load_dword s{26+j}, s[24:25], {128*j}")
    if hop:
        I(f"s_sleep {hop}")
        I("s_mov_b64 exec, 0")
        I("s_branch L_hop0")
        A("L_hopend:")
        I("s_mov_b64 exec, -1")
    if tw:
        I("s_lshl_b32 s18, s50, 20"); I("s_add_u32 s8, s8, s18"); I("s_addc_u32 s9, s9, 0"); I("s_lshl_b32 s18, s50, 8")
        I("s_sleep 64")
        if tw & 1: I("s_load_dword s21, s[8:9], 0")
        if tw & 2: I("s_load_dword s22, s[12:13], s18")
    I("s_bfe_u32 s52, s2, 0x30003"); I("s_lshl_b32 s52, s52, 8")
    for i in range(4): I(f"s_mov_b32 s{80+i}, {sum(lvn[8*i+j] << (4*j) for j in range(8)):#x}")
    cm = sum(1 << x for x in cpl)
    I(f"s_mov_b32 s84, {cm & 0xffffffff:#x}"); I(f"s_mov_b32 s85, {cm >> 32:#x}")
    A("L_hl:")
    I("s_ff1_i32_b64 s53, s[84:85]")
    I("s_cmp_lt_i32 s53, 0")
    I("s_cbranch_scc1 L_hf")
    I("s_bitset0_b64 s[84:85], s53")
    I("s_lshl_b32 s53, s53, 2")
    A("L_hp:")
    I(f"s_sleep {slp}"); I("ds_read_b128 v[4:7], v1 offset:16"); I("s_waitcnt lgkmcnt(0)")
    I("v_add_u32 v4, v4, v5"); I("v_add3_u32 v4, v4, v6, v7"); I("s_nop 0"); I("v_readfirstlane_b32 s55, v4"); I("s_nop 1")
    I("s_cmp_lt_u32 s55, s53"); I("s_cbranch_scc1 L_hp")
    I("s_mov_b32 s55, 1"); I("s_atomic_add s55, s[16:17], s52 glc")
    I("s_add_u32 s52, s52, 2048")
    I("s_waitcnt lgkmcnt(0)")
    I("s_bitcmp1_b32 s55, 4"); I("s_cselect_b64 s[58:59], s[82:83], s[80:81]")
    I("s_lshl_b32 s55, s55, 2"); I("s_lshr_b64 s[58:59], s[58:59], s55"); I("s_and_b32 s58, s58, 15")
    I("v_mov_b32 v2, s58"); I("ds_write_b32 v1, v2")
    I("s_branch L_hl")
    A("L_hf:")
    if fchk:
        I("s_load_dword s20, s[14:15], s56")
        A("L_hf1:")
        I("s_waitcnt lgkmcnt(0)")
        I("s_and_b32 s20, s20, s57")
        I("s_cbranch_scc1 L_hx")
        I("s_sleep 16")
        I("s_atomic_or s20, s[14:15], s56 glc")
        I("s_branch L_hf1")
    A("L_hx:")
    if eb:
        I(f"s_sleep {slp}"); I("ds_read_b128 v[4:7], v1 offset:16"); I("s_waitcnt lgkmcnt(0)")
        I("v_add_u32 v4, v4, v5"); I("v_add3_u32 v4, v4, v6, v7"); I("s_nop 0"); I("v_readfirstlane_b32 s55, v4"); I("s_nop 1")
        I(f"s_cmp_lt_u32 s55, {4*eb}"); I("s_cbranch_scc1 L_hx")
        I(f"v_max_u32 v2, {el}, v2"); I("ds_write_b32 v1, v2")
    I("s_endpgm")
    A('.section .rodata,"a"'); A(".p2align 6"); A(f".amdhsa_kernel {NAME}")
    A(f"  .amdhsa_next_free_vgpr {nv}"); A("  .amdhsa_next_free_sgpr 100"); A(f"  .amdhsa_accum_offset {(nv+3)//4*4}")
    A("  .amdhsa_group_segment_fixed_size 0"); A("  .amdhsa_kernarg_size 56"); A("  .amdhsa_user_sgpr_count 2")
    A("  .amdhsa_user_sgpr_kernarg_segment_ptr 1"); A("  .amdhsa_system_sgpr_workgroup_id_x 1")
    A("  .amdhsa_float_denorm_mode_32 3")
    A(".end_amdhsa_kernel")
    if hop: L = add_hops(L)
    return "\n".join(L)+"\n"

if __name__ == "__main__":
    d = sys.argv[1]
    os.makedirs(d, exist_ok=True)
    for spec in sys.argv[2:]:
        kv = {}
        parts = spec.split(",")
        kv['map'] = parts[0]
        for t in parts[1:]:
            k, v = t.split("=")
            kv[k] = v if k in ('klims','vlims','lv','cps','so') else (int(v, 0) if v[0].isdigit() else v.replace("+", " "))
        name = spec.replace("=", "").replace(",", "_")
        open(f"{d}/{name}.s", "w").write(gen(**kv))
```

```python
import sys, struct, math, os
def f2u(x): return struct.unpack('<I', struct.pack('<f', x))[0]
HEADER = """; Kernarg layout for this problem (56 bytes, ptrs only, base s[0:1]):
"""
NAME = "standalone__linear_kernel_rfa__decode_kernel"

def isize(line):
    t = line.split(';')[0].strip()
    if not t or t.endswith(':') or t.startswith('.'): return 0
    import re
    op = t.split()[0]
    if op.startswith(('buffer_','ds_','v_mfma','v_perm','v_fma','v_pk_','v_lshl_add','v_bfe','v_add3','v_mad','v_cvt_pk','s_load','s_atomic','s_mem')): return 8
    if 'row_ror' in t: return 8
    lits = re.findall(r'(?<![\w\[:])(0x[0-9a-fA-F]+|\d+)(?![\w\]:(])', t.split(None,1)[1] if ' ' in t else '')
    if op.startswith(('s_nop','s_waitcnt','s_sleep','s_movk','s_cbranch','s_branch','s_setprio')): return 4
    for x in lits:
        if int(x, 0) > 64: return 8
    return 4
def add_hops(L):
    out = []; on = False; n = 0; acc = 0
    for i, line in enumerate(L):
        if line.startswith('L_switch:'):
            out.append(line); on = True; acc = 99; continue
        if on and line.startswith('L_fin:'):
            on = False
            out.append("    s_branch L_fin")
            out.append(f"L_hop{n}:"); out.append("    s_branch L_hopend")
        if on:
            sz = isize(line)
            if sz and (acc + sz > 56 or ('saveexec' in line and acc + sz + 4 > 56)) and 'saveexec' not in L[i-1]:
                out.append(f"L_hop{n}:"); out.append(f"    s_cbranch_execz L_hop{n+1}"); n += 1; acc = 0
            acc += sz
        out.append(line)
    return out

def gen(map="wwtcttttxxxcccc", klims="5555", vlims="5555", flags="nt", lds=0, stamps=0, fixed=0, tl=0, tag=0, oflags="", par=0,
        ib=8, slp=3, np=0, ts=0, sf='sc0 sc1', qf='', agg=8, lv='0000123456789acf', l0=3, cps='9.18.27.36.44.51.56.60', so='312', fchk=1, neg=2, eb=0, el=12, pst=0, prio=3, wv=0, wr=0, sb=0, tw=0, kf=0, cw=0, hop=0, iw=2, io=2, enc=-1, em='s', eo=0, dg=0, cp0=0):
    if dg: tl = 1
    L = []; A = L.append
    so = [int(c) for c in str(so)]
    slots = so
    lv = str(lv); lv = "".join(ch*(32//len(lv)) for ch in lv)
    lvn = [int(ch, 16) for ch in lv]; assert len(lvn) == 32
    def pattern(l): return l
    cpl = [int(x) for x in str(cps).split('.')]
    assert len(cpl) <= 12
    CB = 0x20000
    def I(s): A("    "+s)
    NW = 4; nwg = 256
    klims = [int(c) for c in str(klims)]; vlims = [int(c) for c in str(vlims)]
    pos = {k: [12+i for i,ch in enumerate(map) if ch == k] for k in "wtxc"}
    assert len(pos['w']) == 2 and len(pos['t']) == 5 and max(pos['w']+pos['t']) < 20
    wgpos = pos['x']+pos['c']
    mem_i = [i for i,p in enumerate(wgpos) if p < 20]
    assert len(mem_i) == 1
    mem_i = mem_i[0]; mem_p = wgpos[mem_i]
    assert map[8:] == 'xxxcccc' and mem_i == 3
    tmask = sum(1 << p for p in pos['t']) | (1 << 20)
    t1 = 1 << pos['t'][0]
    PL = 65536; OML = PL+8192; QL = OML+2048; DL = QL+2048
    CL = DL+32
    lds = max(lds, DL+96)
    scale = 128**-0.25
    c1 = scale*math.log2(math.e); cneg = -0.5*scale; ism = 8**-0.5
    A(HEADER.rstrip())
    A(f"; @launch grid=({nwg},1,1) block=({NW*64+64},1,1) lds={lds}")
    A('.amdgcn_target "amdgcn-amd-amdhsa--gfx950"')
    A(".text"); A(f".globl {NAME}"); A(".p2align 8"); A(f".type {NAME},@function"); A(f"{NAME}:")
    VO = [1,2,3,4]
    VOL = 5
    RA = [6,7,8,9]
    SEL = [10,11,12,13]
    CNEG, ONE = 14, 15
    ACC, X, W = 16, 20, 24
    RB, PA, A0, A1, BB, DEN, N0, N1, T0, T1, PAT, L16 = 28, 29, 30, 31, 32, 33, 34, 35, 36, 37, 38, 39
    OM = 40
    KR = 56
    CA, PRG, VOLP = 72, 73, 74
    PQ = 76
    TLV, TLL = 80, 81
    nv = 82 if tl else (80 if iw else 75)
    I("s_load_dwordx8 s[4:11], s[0:1], 0")
    I("s_load_dwordx4 s[12:15], s[0:1], 32")
    I("s_load_dwordx2 s[16:17], s[0:1], 48")
    if enc >= 0: fixed = 80
    if enc >= 70: pst = 2
    if stamps or fixed: I("s_memrealtime s[60:61]")
    I(f"s_cmp_ge_u32 s2, {nwg}")
    I("s_cbranch_scc1 L_end")
    I("v_subrev_u32 v0, 64, v0")
    I("v_ashrrev_i32 v20, 6, v0")
    I("v_and_b32 v21, 15, v0          ; n")
    I("v_readfirstlane_b32 s70, v20")
    I("v_bfe_u32 v22, v0, 4, 2        ; g")
    if map[8:] == "xxxcccc" and mem_i == 3:
        I("s_and_b32 s50, s2, 7"); I("s_lshr_b32 s18, s2, 4"); I("s_lshl3_add_u32 s50, s18, s50   ; head")
    else:
        I("s_mov_b32 s50, 0")
        for i,p in enumerate(wgpos):
            if i == mem_i: continue
            I(f"s_bfe_u32 s18, s2, {0x10000+i:#x}"); I(f"s_lshl_b32 s18, s18, {p-20}"); I("s_or_b32 s50, s50, s18")
    I(f"s_bfe_u32 s51, s2, {0x10000+mem_i:#x}      ; member")
    I(f"v_and_b32 v{L16}, 63, v0")
    I(f"v_lshlrev_b32 v{L16}, 4, v{L16}      ; lane*16")
    I("s_cmp_ge_i32 s70, 0")
    I("s_cbranch_scc1 L_stream")
    if cp0:
        I(f"s_and_b32 s19, s2, {8 | ((agg-1) << 4)}")
        I("s_cbranch_scc0 L_nopf")
        I("s_getpc_b64 s[24:25]")
        A("L_pc0:")
        I("s_and_b32 s19, s2, 48"); I(f"s_mul_i32 s19, s19, {cp0*128//16}")
        for j in range(cp0): I(f"s_load_dword s26, s[24:25], s19 offset:{128*(j+1)}")
        A("L_nopf:")
    I("s_lshl_b32 s18, s50, 10")
    I(f"s_mov_b32 s46, {1024+(agg-1)*8192}"); I("s_mov_b32 s47, 0x20000")
    for r in range(4): I(f"v_mov_b32 v{W+r}, -1")
    I(f"s_and_b32 s19, s2, {8 | ((agg-1) << 4)}")
    I("s_waitcnt lgkmcnt(0)")
    I("s_cbranch_scc1 L_h0")
    I("s_add_u32 s44, s16, s18"); I("s_addc_u32 s45, s17, 0")
    if not (np & 1):
        for j in range(agg):
            if j: I(f"s_mov_b32 s18, {8192*j}")
            I(f"buffer_store_dwordx4 v[{W}:{W+3}], v{L16}, s[44:47], {'s18' if j else '0'} offen {sf}")
    A("L_h0:")
    I("s_branch L_helper")
    A("L_stream:")
    if prio: I(f"s_setprio {prio}")
    I(f"s_lshl_b32 s3, s51, {mem_p}")
    if wr:
        assert pos['w'] == [12,13]
        I("s_lshl_b32 s83, s70, 12")
    elif pos['w'] == [12,13]:
        I("s_lshl_b32 s18, s70, 12"); I("s_or_b32 s3, s3, s18")
    else:
        for i,p in enumerate(pos['w']):
            I(f"s_bfe_u32 s18, s70, {0x10000+i:#x}"); I(f"s_lshl_b32 s18, s18, {p}"); I("s_or_b32 s3, s3, s18")
    I(f"v_add_u32 v{VOL}, s3, v{L16}")
    I("v_lshlrev_b32 v23, 6, v22      ; (4g)*16")
    I(f"v_xor_b32 v{VO[0]}, v{VOL}, v23")
    for c in range(1,4): I(f"v_xor_b32 v{VO[c]}, {16*c}, v{VO[0]}")
    I("s_lshl_b32 s71, s70, 14")
    I("s_lshl_b32 s19, s70, 10")
    if kf: I("s_mov_b32 s86, s19")
    I(f"s_add_u32 m0, s19, {OML}")
    I("s_mov_b32 s31, 0x20000"); I("s_movk_i32 s30, 256")
    I("s_lshl_b32 s18, s50, 20")
    I("s_lshl_b32 s55, s50, 8")
    I("s_mov_b32 s22, 0x100000"); I("s_mov_b32 s23, 0x20000")
    I(f"s_mov_b32 s48, {t1:#x}")
    I("s_waitcnt lgkmcnt(0)")
    I("s_add_u32 s4, s4, s55"); I("s_addc_u32 s5, s5, 0")
    I("s_cmp_lt_u32 s70, 2")
    I("s_cselect_b32 s28, s10, s4"); I("s_cselect_b32 s29, s11, s5"); I("s_cselect_b32 s30, 2048, s30"); I("s_cselect_b32 s19, s19, 0")
    if not kf and not (np & 16): I(f"buffer_load_dwordx4 v{L16}, s[28:31], s19 offen {qf} lds")
    if pst: I("s_memrealtime s[88:89]")
    I("s_mov_b32 m0, s71")
    I("s_add_u32 s20, s6, s18"); I("s_addc_u32 s21, s7, 0")
    def ld(c, so=None):
      if so is None: so = "s84" if wr else "s48"
      I(f"buffer_load_dwordx4 v{VO[c]}, s[20:23], {so} offen offset:{1024*c} {flags} lds")
    for c in range(4): ld(c, "s83" if wr else "0")
    if kf:
        I(f"s_add_u32 m0, s86, {OML}"); I("s_nop 0")
        I(f"buffer_load_dwordx4 v{L16}, s[28:31], s19 offen {qf} lds")
    I("s_or_b32 m0, s71, 0x1000")
    I("s_movk_i32 s73, 0x1000")
    def wrot():
        if wr == 1: I("s_xor_b32 s84, s83, s73"); I("s_or_b32 s84, s84, s48")
        elif wr == 2: I("s_lshr_b32 s84, s48, 4"); I("s_xor_b32 s84, s84, s83"); I("s_and_b32 s84, s84, 0x3000"); I("s_or_b32 s84, s84, s48")
    wrot()
    for c in range(ib-4): ld(c)
    if pst == 2: I("s_memrealtime s[90:91]")
    I("s_add_u32 s24, s8, s18"); I("s_addc_u32 s25, s9, 0")
    I("s_lshl_b32 s56, s50, 10")
    I("s_add_u32 s44, s16, s56"); I("s_addc_u32 s45, s17, 0"); I("s_movk_i32 s46, 1024"); I("s_mov_b32 s47, 0x20000")
    I("v_and_b32 v16, 3, v21"); I("v_lshlrev_b32 v16, 10, v16")
    I("v_lshrrev_b32 v17, 2, v21"); I("v_lshl_add_u32 v16, v17, 8, v16   ; kappa*256")
    I("v_xor_b32 v18, v22, v21"); I(f"v_lshl_add_u32 v{RB}, v18, 4, v16")
    I("v_lshlrev_b32 v17, 1, v17"); I("v_and_b32 v18, 1, v21"); I("v_add_u32 v17, v17, v18   ; m(i)")
    I(f"s_mov_b32 s58, {OML}")
    I(f"v_lshl_add_u32 v{RA[1]}, v22, 4, s58   ; g*16 + OML"); I(f"v_lshl_add_u32 v{RA[0]}, v17, 8, v{RA[1]}")
    I("s_lshl_b32 s59, s70, 11"); I(f"s_add_u32 s59, s59, {PL}")
    I(f"v_lshl_add_u32 v{PA}, v21, 2, s59")
    I("v_cmp_gt_u32 vcc, 8, v21")
    I("v_mov_b32 v16, 0x0100"); I("v_mov_b32 v17, 0x0302")
    I("v_cndmask_b32 v16, v16, v17, vcc")
    I("v_cmp_eq_u32 vcc, 0, v18")
    I("v_or_b32 v17, 0x0c0c0000, v16")
    I("v_lshlrev_b32 v16, 16, v16"); I("v_or_b32 v16, 0x0c0c, v16")
    I("v_cndmask_b32 v16, v16, v17, vcc")
    I("v_bfe_u32 v18, v21, 1, 2")
    I("v_mov_b32 v17, 0x0c0c0c0c")
    for q in range(4):
        I(f"v_cmp_eq_u32 vcc, {q}, v18"); I("s_nop 1"); I(f"v_cndmask_b32 v{SEL[q]}, v17, v16, vcc")
    I(f"v_mov_b32 v{CNEG}, {f2u(cneg):#x}")
    I(f"v_mov_b32 v{ONE}, 1.0")
    I(f"v_mov_b32 v{DEN}, 0")
    for r in range(4): I(f"v_mov_b32 v{ACC+r}, 0")
    I(f"s_mov_b32 s52, {f2u(c1):#x}"); I(f"s_mov_b32 s53, {f2u(ism):#x}"); I(f"s_mov_b32 s54, {f2u(1e-6):#x}")
    I("s_mov_b32 s74, 0x07060302")
    I("s_add_u32 s36, s12, s55"); I("s_addc_u32 s37, s13, 0"); I("s_movk_i32 s38, 256"); I("s_mov_b32 s39, 0x20000")
    if tl:
        I(f"v_and_b32 v{TLL}, 63, v0"); I(f"v_mov_b32 v{TLV}, 0"); I("s_mov_b32 s78, 0")
    I(f"v_mov_b32 v{PAT}, {pattern(l0):#x}"); I(f"v_mov_b32 v{PRG}, 1")
    if iw:
        for r in range(4): I(f"v_mov_b32 v{PQ+r}, 0")
    I("s_lshl_b32 s18, s70, 2"); I(f"s_add_u32 s18, s18, {CL+16}"); I(f"v_mov_b32 v{CA}, {CL}"); I(f"v_mov_b32 v{VOLP}, s18")
    if pst == 1: I("s_memrealtime s[90:91]")
    if not (np & 8): I(f"s_waitcnt vmcnt({ib-4 if kf else ib})")
    if pst: I("s_memrealtime s[92:93]")
    I("s_barrier")
    if pst: I("s_memrealtime s[94:95]"); I("s_waitcnt lgkmcnt(0)")
    for c in range(4): I(f"ds_read_b128 v[{OM+4*c}:{OM+4*c+3}], v{RA[0]} offset:{64*c}")
    for c in range(4): I(f"ds_read_b128 v[{KR+4*c}:{KR+4*c+3}], v{RA[1]} offset:{2048+64*c}")
    def proj():
        I(f"v_mov_b32 v{N0}, 0"); I(f"v_mov_b32 v{N1}, 0")
        for c in range(4):
            I(f"s_waitcnt lgkmcnt({3-c})")
            srcc = "0" if c == 0 else f"v[{X}:{X+3}]"
            I(f"v_mfma_f32_16x16x32_bf16 v[{X}:{X+3}], v[{OM+4*c}:{OM+4*c+3}], v[{KR+4*c}:{KR+4*c+3}], {srcc}")
            for j in range(4): I(f"v_dot2c_f32_bf16 v{N0+(j&1)}, v{KR+4*c+j}, v{KR+4*c+j}")
        I("s_nop 2")
        I(f"v_add_f32 v{N0}, v{N0}, v{N1}")
        I("s_nop 1")
        I(f"v_mfma_f32_16x16x4_f32 v[{X}:{X+3}], v{CNEG}, v{N0}, v[{X}:{X+3}]")
    if not (np & 8): proj()
    I("s_nop 9")
    I(f"v_mul_f32 v{A0}, s52, v{X}"); I(f"v_mul_f32 v{A1}, s52, v{X+1}")
    I(f"v_exp_f32 v{A0}, v{A0}"); I(f"v_exp_f32 v{A1}, v{A1}")
    I(f"v_mov_b32 v{T0}, s54")
    I(f"v_fma_f32 v{A0}, v{A0}, s53, v{T0}"); I(f"v_fma_f32 v{A1}, v{A1}, s53, v{T0}")
    I(f"v_add_f32 v{BB}, v{A0}, v{A1}"); I(f"v_mul_f32 v{BB}, s54, v{BB}")
    I(f"v_mul_f32 v{A0}, s53, v{A0}"); I(f"v_mul_f32 v{A1}, s53, v{A1}")
    for c in range(ib-4, 4):
        I("s_waitcnt vmcnt(4)"); ld(c)
    nlab = [0]
    def wait(lims, j):
        if j in so:
            nlab[0] += 1
            I(f"s_cmp_ge_u32 s80, {4*(so.index(j)+1)+neg}")
            I(f"s_cbranch_scc1 L_p{nlab[0]}")
            I(f"s_waitcnt vmcnt({lims[j]-1})")
            if neg and so.index(j) == 0:
                I(f"s_cmp_ge_u32 s80, {neg}")
                I(f"s_cbranch_scc1 L_p{nlab[0]}")
                I(f"s_waitcnt vmcnt({lims[j]-2})")
            A(f"L_p{nlab[0]}:")
        else: I(f"s_waitcnt vmcnt({lims[j]-1})")
    def top():
        if tl: I("s_memrealtime s[76:77]")
        if 0 <= enc < 64:
            nlab[0] += 1
            I("s_add_u32 s87, s87, 1"); I(f"s_cmp_lg_u32 s87, {enc+1}"); I(f"s_cbranch_scc1 L_e{nlab[0]}")
            I("s_memrealtime s[98:99]"); I("s_waitcnt lgkmcnt(0)"); A(f"L_e{nlab[0]}:")
        if iw:
            I(f"v_add3_u32 v{PQ}, v{PQ}, v{PQ+1}, v{PQ+2}")
            I(f"v_mad_i32_i24 v{PQ+3}, v{PRG}, -4, v{PQ+3}")
            I(f"v_add3_u32 v{PQ}, v{PQ}, v{PQ+3}, {io}")
            I(f"v_mad_i32_i24 v{PAT}, v{PQ}, {iw}, v{PAT}")
            I(f"v_max_i32 v{PAT}, 0, v{PAT}")
            I(f"v_add_u32 v{PRG}, 1, v{PRG}")
            I(f"v_readfirstlane_b32 s80, v{PAT}")
            I(f"ds_write_b32 v{VOLP}, v{PRG}")
            I(f"ds_read_b32 v{PAT}, v{CA}")
            I(f"ds_read_b128 v[{PQ}:{PQ+3}], v{CA} offset:16")
        else:
            I(f"v_readfirstlane_b32 s80, v{PAT}")
            I(f"v_add_u32 v{PRG}, 1, v{PRG}")
            I(f"ds_read_b32 v{PAT}, v{CA}")
            I(f"ds_write_b32 v{VOLP}, v{PRG}")
        I(f"s_or_b32 s48, s48, {(~tmask) & 0xffffffff:#x}"); I("s_add_u32 s48, s48, 1"); I(f"s_and_b32 s48, s48, {tmask:#x}")
        I("s_add_u32 s73, s73, 0x1000"); I("s_and_b32 s73, s73, 0x3000"); I("s_or_b32 m0, s71, s73"); I("s_xor_b32 s72, m0, 0x2000")
        I("s_lshr_b32 s81, s73, 12"); I("s_add_u32 s80, s80, s81")
        if tl:
            I("s_waitcnt lgkmcnt(0)"); I("s_sub_u32 s76, s76, s60"); I(f"v_mov_b32 v{T1}, s76"); I(f"v_cmp_eq_u32 vcc, s78, v{TLL}"); I("s_add_u32 s78, s78, 1"); I("s_nop 0")
            I(f"v_cndmask_b32 v{TLV}, v{TLV}, v{T1}, vcc")
    def kslot(lims):
        done = []; cur = -99
        for j in range(4):
            cur = max(cur, 8+j-lims[j]-(9 if j in slots else 0)); done.append(cur)
        return min(j for j in range(4) if done[j] >= 3)
    def k_addr():
        I(f"v_add_u32 v{RA[0]}, s72, v{RB}")
        for c in range(1,4): I(f"v_xor_b32 v{RA[c]}, {64*c}, v{RA[0]}")
    def k_read():
        for c in range(4): I(f"ds_read_b128 v[{KR+4*c}:{KR+4*c+3}], v{RA[c]}")
    def k_exp():
        I("s_nop 7")
        I(f"v_mul_f32 v{T0}, s52, v{X}"); I(f"v_mul_f32 v{T1}, s52, v{X+1}")
        I(f"v_exp_f32 v{T0}, v{T0}"); I(f"v_exp_f32 v{T1}, v{T1}")
        I("s_nop 0")
        I(f"v_fma_f32 v{T0}, v{A0}, v{T0}, v{BB}"); I(f"v_fma_f32 v{T0}, v{A1}, v{T1}, v{T0}")
        I(f"v_add_f32 v{DEN}, v{DEN}, v{T0}")
        I("s_nop 0")
        I(f"v_mfma_f32_16x16x4_f32 v[{W}:{W+3}], v{ONE}, v{T0}, 0")
    def k_pack():
        I("s_nop 7")
        I(f"v_and_b32 v{T0}, 0xffff0000, v{W}"); I(f"v_sub_f32 v{T0}, v{W}, v{T0}")
        I(f"v_perm_b32 v{T0}, v{W}, v{T0}, s74")
        I("s_mov_b64 exec, 0xffff")
        I(f"ds_write_b32 v{PA}, v{T0}")
        I("s_mov_b64 exec, -1")
        I(f"v_add_u32 v{PA}, 64, v{PA}")
    ks = kslot(klims)
    sched = {0: [k_read], 1: [proj], 2: [k_exp], 3: [k_pack]} if ks == 0 else {0: [], 1: [k_read, proj], 2: [k_exp], 3: [k_pack]}
    assert ks <= 1
    if sb: I("s_mov_b32 s86, 0")
    if enc >= 0: I("s_mov_b32 s87, 0")
    A("L_kloop:")
    top()
    I("s_cmp_lg_u32 s48, 0x100000")
    I("s_cbranch_scc1 L_kgo")
    I("s_mov_b32 s48, 0"); I("s_mov_b32 s20, s24"); I("s_mov_b32 s21, s25")
    for c in range(4): I(f"v_mov_b32 v{VO[c]}, v{VOL}")
    if sb: I(f"s_mov_b32 s86, {sb}")
    A("L_kgo:")
    if sb: I("s_max_u32 s80, s80, s86")
    wrot()
    k_addr()
    for j in range(4):
        wait(klims, j); ld(j)
        for f in sched[j]: f()
    I(f"s_cmp_lg_u32 s48, {t1:#x}")
    I("s_cbranch_scc1 L_kloop")
    def p_read():
        I(f"ds_read_b128 v[{W}:{W+3}], v{PA}")
        I(f"v_add_u32 v{PA}, 64, v{PA}")
    def perms(rs, w=True):
        if w: I("s_waitcnt lgkmcnt(0)")
        for r in rs:
            for q in range(4): I(f"v_perm_b32 v{OM+4*r+q}, v{W+r}, v{W+r}, v{SEL[q]}")
    A("L_switch:")
    I(f"v_bfe_u32 v{T0}, v0, 4, 2")
    I(f"v_lshl_add_u32 v{PA}, v{T0}, 4, s59")
    p_read()
    for sh in (8,4,2,1):
        I(f"v_add_f32 v{DEN}, v{DEN}, v{DEN} row_ror:{sh}"); I("s_nop 1")
    I(f"v_mfma_f32_16x16x4_f32 v[{X}:{X+3}], v{ONE}, v{DEN}, 0")
    perms(range(4))
    I("s_lshl_b32 s18, s70, 2"); I(f"s_add_u32 s18, s18, {DL}"); I(f"v_mov_b32 v{T0}, s18")
    I("s_mov_b64 exec, 1")
    I(f"ds_write_b32 v{T0}, v{X}")
    I("s_mov_b64 exec, -1")
    I(f"v_and_b32 v{T0}, 15, v0"); I(f"v_lshl_add_u32 v{RA[1]}, v{T0}, 5, s59"); I(f"v_bfe_u32 v{T0}, v0, 4, 1"); I(f"v_lshl_add_u32 v{RA[1]}, v{T0}, 4, v{RA[1]}")
    I(f"v_bfe_u32 v{T0}, v0, 5, 1"); I(f"v_lshl_add_u32 v{RA[1]}, v{T0}, 9, v{RA[1]}")
    I(f"s_mov_b32 s18, {PL}"); I(f"v_lshl_add_u32 v{RA[2]}, v0, 2, s18"); I(f"v_mov_b32 v{RA[3]}, {DL}")
    I(f"v_lshlrev_b32 v{A0}, 3, v0"); I(f"v_lshlrev_b32 v{A1}, 1, v0")
    vs = kslot(vlims)
    assert vs <= 1
    def v_mm():
        for r in range(4): I(f"ds_read_b128 v[{KR+4*r}:{KR+4*r+3}], v{RA[0]} offset:{1024*r}")
        for r in range(4):
            I(f"s_waitcnt lgkmcnt({3-r})")
            I(f"v_mfma_f32_16x16x32_bf16 v[{ACC}:{ACC+3}], v[{OM+4*r}:{OM+4*r+3}], v[{KR+4*r}:{KR+4*r+3}], v[{ACC}:{ACC+3}]")
        I(f"s_cmp_eq_u32 s48, {0x100000+t1:#x}")
        I("s_cbranch_scc1 L_done")
    if vs == 0: sched = {0: [v_mm], 1: [p_read], 2: [lambda: perms([0,1])], 3: [lambda: perms([2,3], False)]}
    else: sched = {0: [], 1: [v_mm, p_read], 2: [lambda: perms([0,1])], 3: [lambda: perms([2,3], False)]}
    A("L_vloop:")
    top()
    wrot()
    I(f"v_add_u32 v{RA[0]}, s72, v{L16}")
    for j in range(4):
        wait(vlims, j); ld(j)
        for f in sched[j]: f()
    I("s_branch L_vloop")
    A("L_done:")
    if stamps: I("s_memrealtime s[62:63]")
    if enc == 64: I("s_memrealtime s[98:99]")
    if wv:
        I("s_waitcnt lgkmcnt(0)"); I(f"v_mov_b32 v{T1}, s62"); I(f"ds_write_b32 v{VOLP}, v{T1} offset:16")
    if ts: I("s_memtime s[88:89]")
    I("s_nop 4")
    I("s_cmp_ge_u32 s70, 2")
    I(f"ds_write_b128 v{RA[1]}, v[{ACC}:{ACC+3}]")
    I("s_waitcnt lgkmcnt(0)")
    I("s_barrier")
    I("s_cbranch_scc1 L_end")
    if ts: I("s_memtime s[90:91]")
    for w in range(4): I(f"ds_read2st64_b32 v[{40+2*w}:{41+2*w}], v{RA[2]} offset0:{8*w} offset1:{8*w+2}")
    I(f"ds_read_b128 v[48:51], v{RA[3]}")
    I("s_waitcnt lgkmcnt(0)")
    I("v_pk_add_f32 v[40:41], v[40:41], v[42:43]"); I("v_pk_add_f32 v[44:45], v[44:45], v[46:47]")
    I("v_pk_add_f32 v[48:49], v[48:49], v[50:51]"); I("v_pk_add_f32 v[40:41], v[40:41], v[44:45]")
    I("v_add_f32 v43, v48, v49"); I("v_add_f32 v42, v40, v41")
    I("v_and_b32 v41, 0x7fffffff, v43"); I("v_mov_b32 v40, v42")
    if ts: I("s_memtime s[92:93]")
    I(f"buffer_atomic_swap_x2 v[40:41], v{A0}, s[44:47], 0 offen sc0")
    I("s_waitcnt vmcnt(0)")
    if ts: I("s_memtime s[94:95]")
    I("v_cmp_le_i32 vcc, 0, v41")
    I("s_and_saveexec_b64 s[56:57], vcc")
    I("s_cbranch_execz L_fin")
    I("v_add_f32 v43, v43, v41"); I("v_add_f32 v43, s54, v43"); I("v_rcp_f32 v44, v43"); I("v_add_f32 v42, v42, v40")
    I("v_fma_f32 v45, -v43, v44, 1.0"); I("v_fma_f32 v44, v45, v44, v44")
    I("v_mul_f32 v42, v42, v44")
    I("v_cvt_pk_bf16_f32 v42, v42, v42")
    I(f"buffer_store_short v42, v{A1}, s[36:39], 0 offen {oflags}")
    A("L_fin:")
    if fixed or stamps:
        I("s_mov_b64 exec, -1")
        I("s_cmp_lg_u32 s70, 0"); I("s_cbranch_scc1 L_end")
    if enc >= 0:
        if enc == 65: I("s_memrealtime s[98:99]")
        if enc >= 70: I(f"s_mov_b32 s98, s{88+2*(enc-70)}")
        I("s_waitcnt lgkmcnt(0)")
        I("s_sub_u32 s98, s98, s60")
        for lab, t in (("L_s1", 5500), ("L_s2", 7000)):
            A(lab+":")
            I("s_memrealtime s[68:69]"); I("s_waitcnt lgkmcnt(0)"); I("s_sub_u32 s68, s68, s60")
            I(f"s_cmp_lt_u32 s68, {t}"); I(f"s_cbranch_scc1 {lab}")
            if lab == "L_s1":
                if dg:
                    I("s_mov_b32 s40, s14"); I("s_mov_b32 s41, s15"); I("s_movk_i32 s42, 256"); I("s_mov_b32 s43, 0x20000")
                    mk = sum(1 << x for x in (0,1,2,3,4,5,6,8,10,14,30,46,62))
                    I(f"s_mov_b32 exec_lo, {mk & 0xffffffff:#x}"); I(f"s_mov_b32 exec_hi, {mk >> 32:#x}")
                    I(f"v_mbcnt_lo_u32_b32 v{TLL}, exec_lo, 0"); I(f"v_mbcnt_hi_u32_b32 v{TLL}, exec_hi, v{TLL}"); I(f"v_lshlrev_b32 v{TLL}, 2, v{TLL}")
                    I(f"buffer_atomic_add v{TLV}, v{TLL}, s[40:43], 0 offen offset:4")
                    I("s_mov_b64 exec, -1")
                if em == 'G':
                    I("s_and_b32 s99, s60, 0xfffff"); I("s_add_u32 s98, s98, s99"); I("s_atomic_add s99, s[14:15], 60")
                I(("s_atomic_add" if em == 's' else "s_atomic_umax") + " s98, s[14:15], 56"); I("s_waitcnt lgkmcnt(0)")
        I("s_mov_b32 s98, 0"); I("s_atomic_or s98, s[14:15], 56 glc"); I("s_waitcnt lgkmcnt(0)")
        if em == 'G':
            I("s_mov_b32 s99, 0"); I("s_atomic_or s99, s[14:15], 60 glc"); I("s_waitcnt lgkmcnt(0)"); I("s_lshr_b32 s99, s99, 8"); I("s_sub_u32 s98, s98, s99")
        I("s_mul_i32 s98, s98, 10")
        if em == 's': I("s_lshr_b32 s98, s98, 8")
        I(f"s_sub_i32 s98, s98, {eo*1000}"); I("s_max_i32 s98, s98, 0"); I("s_min_i32 s98, s98, 15000")
        I("s_add_u32 s60, s60, s98")
    if fixed:
        A("L_spin:")
        I("s_memrealtime s[68:69]"); I("s_waitcnt lgkmcnt(0)"); I("s_sub_u32 s68, s68, s60")
        I(f"s_cmp_lt_i32 s68, {fixed*100}"); I("s_cbranch_scc1 L_spin")
    if stamps:
        if ts:
            I("s_waitcnt vmcnt(0)"); I("s_memtime s[96:97]")
        I("s_memrealtime s[64:65]")
        I("s_getreg_b32 s66, hwreg(HW_REG_XCC_ID)"); I("s_getreg_b32 s67, hwreg(HW_REG_HW_ID)")
        I("s_waitcnt lgkmcnt(0)")
        I("s_mov_b32 s61, 0"); I("s_sub_u32 s63, s64, s62")
        if wv:
            I(f"ds_read_b128 v[40:43], v{CA} offset:32"); I("s_waitcnt lgkmcnt(0)")
            for r in range(4): I(f"v_readfirstlane_b32 s{88+2*r}, v{40+r}")
            I("s_nop 1")
            for r in (88,90,92,94): I(f"s_sub_u32 s{r}, s64, s{r}")
            I("s_pack_ll_b32_b16 s61, s88, s90"); I("s_pack_ll_b32_b16 s65, s92, s94")
        if pst:
            for r in (88,90,92,94): I(f"s_sub_u32 s{r}, s{r}, s60")
            I("s_pack_ll_b32_b16 s61, s88, s90"); I("s_pack_ll_b32_b16 s65, s92, s94")
        if ts:
            I("s_sub_u32 s96, s96, s94"); I("s_sub_u32 s94, s94, s92"); I("s_sub_u32 s92, s92, s90"); I("s_sub_u32 s90, s90, s88")
            I("s_pack_ll_b32_b16 s61, s90, s92"); I("s_pack_ll_b32_b16 s65, s94, s96")
        for j in range(8): I(f"v_mov_b32 v{20+j}, s{60+j}")
        I("s_add_u32 s44, s16, 0x100000"); I("s_addc_u32 s45, s17, 0"); I("s_mov_b32 s46, 0x100000")
        if tl:
            I("s_lshl_b32 s55, s2, 8"); I("s_add_u32 s55, s55, 0x80000"); I(f"v_lshlrev_b32 v{TLL}, 2, v{TLL}")
            I(f"buffer_store_dword v{TLV}, v{TLL}, s[44:47], s55 offen")
        I("s_lshl_b32 s55, s2, 5"); I("v_mov_b32 v14, 0"); I("s_mov_b64 exec, 1")
        I("buffer_store_dwordx4 v[20:23], v14, s[44:47], s55 offen")
        I("buffer_store_dwordx4 v[24:27], v14, s[44:47], s55 offen offset:16")
    A("L_end:")
    I("s_endpgm")
    A("L_helper:")
    I(f"v_mov_b32 v1, {CL}"); I(f"v_mov_b32 v2, {pattern(l0):#x}")
    for r in range(4): I(f"v_mov_b32 v{4+r}, 1")
    I("ds_write_b32 v1, v2"); I("ds_write_b128 v1, v[4:7] offset:16")
    I(f"s_add_u32 s16, s16, {CB:#x}"); I("s_addc_u32 s17, s17, 0")
    I("s_waitcnt lgkmcnt(0)")
    I("s_barrier")
    I(f"s_cmp_ge_u32 s2, {8*len(cpl)}")
    I("s_cbranch_scc1 L_h1")
    I("s_lshl_b32 s18, s2, 8"); I("s_mov_b32 s20, 0")
    I("s_atomic_swap s20, s[16:17], s18")
    A("L_h1:")
    I(f"s_andn2_b32 s56, s50, {(agg-1)*8}")
    I("s_lshl_b32 s57, 1, s56"); I("s_lshr_b32 s56, s56, 5"); I("s_lshl_b32 s56, s56, 6")
    I("s_cmp_lg_u32 s19, 0")
    I("s_cbranch_scc1 L_h2")
    I("s_waitcnt vmcnt(0)")
    I("s_atomic_or s57, s[14:15], s56")
    A("L_h2:")
    if cw:
        I(f"s_sleep {cw}")
        I("s_getpc_b64 s[24:25]")
        A("L_pc:")
        I("s_sub_u32 s24, s24, L_pc-L_switch"); I("s_subb_u32 s25, s25, 0")
        for j in range(9): I(f"s_load_dword s{26+j}, s[24:25], {128*j}")
    if hop:
        I(f"s_sleep {hop}")
        I("s_mov_b64 exec, 0")
        I("s_branch L_hop0")
        A("L_hopend:")
        I("s_mov_b64 exec, -1")
    if tw:
        I("s_lshl_b32 s18, s50, 20"); I("s_add_u32 s8, s8, s18"); I("s_addc_u32 s9, s9, 0"); I("s_lshl_b32 s18, s50, 8")
        I("s_sleep 64")
        if tw & 1: I("s_load_dword s21, s[8:9], 0")
        if tw & 2: I("s_load_dword s22, s[12:13], s18")
    I("s_bfe_u32 s52, s2, 0x30003"); I("s_lshl_b32 s52, s52, 8")
    for i in range(4): I(f"s_mov_b32 s{80+i}, {sum(lvn[8*i+j] << (4*j) for j in range(8)):#x}")
    cm = sum(1 << x for x in cpl)
    I(f"s_mov_b32 s84, {cm & 0xffffffff:#x}"); I(f"s_mov_b32 s85, {cm >> 32:#x}")
    A("L_hl:")
    I("s_ff1_i32_b64 s53, s[84:85]")
    I("s_cmp_lt_i32 s53, 0")
    I("s_cbranch_scc1 L_hf")
    I("s_bitset0_b64 s[84:85], s53")
    I("s_lshl_b32 s53, s53, 2")
    A("L_hp:")
    I(f"s_sleep {slp}"); I("ds_read_b128 v[4:7], v1 offset:16"); I("s_waitcnt lgkmcnt(0)")
    I("v_add_u32 v4, v4, v5"); I("v_add3_u32 v4, v4, v6, v7"); I("s_nop 0"); I("v_readfirstlane_b32 s55, v4"); I("s_nop 1")
    I("s_cmp_lt_u32 s55, s53"); I("s_cbranch_scc1 L_hp")
    I("s_mov_b32 s55, 1"); I("s_atomic_add s55, s[16:17], s52 glc")
    I("s_add_u32 s52, s52, 2048")
    I("s_waitcnt lgkmcnt(0)")
    I("s_bitcmp1_b32 s55, 4"); I("s_cselect_b64 s[58:59], s[82:83], s[80:81]")
    I("s_lshl_b32 s55, s55, 2"); I("s_lshr_b64 s[58:59], s[58:59], s55"); I("s_and_b32 s58, s58, 15")
    I("v_mov_b32 v2, s58"); I("ds_write_b32 v1, v2")
    I("s_branch L_hl")
    A("L_hf:")
    if fchk:
        I("s_load_dword s20, s[14:15], s56")
        A("L_hf1:")
        I("s_waitcnt lgkmcnt(0)")
        I("s_and_b32 s20, s20, s57")
        I("s_cbranch_scc1 L_hx")
        I("s_sleep 16")
        I("s_atomic_or s20, s[14:15], s56 glc")
        I("s_branch L_hf1")
    A("L_hx:")
    if eb:
        I(f"s_sleep {slp}"); I("ds_read_b128 v[4:7], v1 offset:16"); I("s_waitcnt lgkmcnt(0)")
        I("v_add_u32 v4, v4, v5"); I("v_add3_u32 v4, v4, v6, v7"); I("s_nop 0"); I("v_readfirstlane_b32 s55, v4"); I("s_nop 1")
        I(f"s_cmp_lt_u32 s55, {4*eb}"); I("s_cbranch_scc1 L_hx")
        I(f"v_max_u32 v2, {el}, v2"); I("ds_write_b32 v1, v2")
    I("s_endpgm")
    A('.section .rodata,"a"'); A(".p2align 6"); A(f".amdhsa_kernel {NAME}")
    A(f"  .amdhsa_next_free_vgpr {nv}"); A("  .amdhsa_next_free_sgpr 100"); A(f"  .amdhsa_accum_offset {(nv+3)//4*4}")
    A("  .amdhsa_group_segment_fixed_size 0"); A("  .amdhsa_kernarg_size 56"); A("  .amdhsa_user_sgpr_count 2")
    A("  .amdhsa_user_sgpr_kernarg_segment_ptr 1"); A("  .amdhsa_system_sgpr_workgroup_id_x 1")
    A("  .amdhsa_float_denorm_mode_32 3")
    A(".end_amdhsa_kernel")
    if hop: L = add_hops(L)
    return "\n".join(L)+"\n"

if __name__ == "__main__":
    d = sys.argv[1]
    os.makedirs(d, exist_ok=True)
    for spec in sys.argv[2:]:
        kv = {}
        parts = spec.split(",")
        kv['map'] = parts[0]
        for t in parts[1:]:
            k, v = t.split("=")
            kv[k] = v if k in ('klims','vlims','lv','cps','so') else (int(v, 0) if v[0].isdigit() else v.replace("+", " "))
        name = spec.replace("=", "").replace(",", "_")
        open(f"{d}/{name}.s", "w").write(gen(**kv))
```

```python
import sys, struct, math, os
def f2u(x): return struct.unpack('<I', struct.pack('<f', x))[0]
HEADER = """; Kernarg layout for this problem (56 bytes, ptrs only, base s[0:1]):
"""
NAME = "standalone__linear_kernel_rfa__decode_kernel"

def isize(line):
    t = line.split(';')[0].strip()
    if not t or t.endswith(':') or t.startswith('.'): return 0
    import re
    op = t.split()[0]
    if op.startswith(('buffer_','ds_','v_mfma','v_perm','v_fma','v_pk_','v_lshl_add','v_bfe','v_add3','v_mad','v_cvt_pk','s_load','s_atomic','s_mem')): return 8
    if 'row_ror' in t: return 8
    lits = re.findall(r'(?<![\w\[:])(0x[0-9a-fA-F]+|\d+)(?![\w\]:(])', t.split(None,1)[1] if ' ' in t else '')
    if op.startswith(('s_nop','s_waitcnt','s_sleep','s_movk','s_cbranch','s_branch','s_setprio')): return 4
    for x in lits:
        if int(x, 0) > 64: return 8
    return 4
def add_hops(L):
    out = []; on = False; n = 0; acc = 0
    for i, line in enumerate(L):
        if line.startswith('L_switch:'):
            out.append(line); on = True; acc = 99; continue
        if on and line.startswith('L_fin:'):
            on = False
            out.append("    s_branch L_fin")
            out.append(f"L_hop{n}:"); out.append("    s_branch L_hopend")
        if on:
            sz = isize(line)
            if sz and (acc + sz > 56 or ('saveexec' in line and acc + sz + 4 > 56)) and 'saveexec' not in L[i-1]:
                out.append(f"L_hop{n}:"); out.append(f"    s_cbranch_execz L_hop{n+1}"); n += 1; acc = 0
            acc += sz
        out.append(line)
    return out

def gen(map="wwtcttttxxxcccc", klims="5555", vlims="5555", flags="nt", lds=0, stamps=0, fixed=0, tl=0, tag=0, oflags="", par=0,
        ib=8, slp=3, np=0, ts=0, sf='sc0 sc1', qf='', agg=8, lv='0000123456789acf', l0=3, cps='9.18.27.36.44.51.56.60', so='312', fchk=1, neg=2, eb=0, el=12, pst=0, prio=3, wv=0, wr=0, sb=0, tw=0, kf=0, cw=0, hop=0, iw=2, io=2, enc=-1, em='s', eo=0, dg=0, cp0=0, ci=0, pt=0):
    if dg: tl = 1
    L = []; A = L.append
    so = [int(c) for c in str(so)]
    slots = so
    lv = str(lv); lv = "".join(ch*(32//len(lv)) for ch in lv)
    lvn = [int(ch, 16) for ch in lv]; assert len(lvn) == 32
    def pattern(l): return l
    cpl = [int(x) for x in str(cps).split('.')]
    assert len(cpl) <= 12
    CB = 0x20000
    def I(s): A("    "+s)
    NW = 4; nwg = 256
    klims = [int(c) for c in str(klims)]; vlims = [int(c) for c in str(vlims)]
    pos = {k: [12+i for i,ch in enumerate(map) if ch == k] for k in "wtxc"}
    assert len(pos['w']) == 2 and len(pos['t']) == 5 and max(pos['w']+pos['t']) < 20
    wgpos = pos['x']+pos['c']
    mem_i = [i for i,p in enumerate(wgpos) if p < 20]
    assert len(mem_i) == 1
    mem_i = mem_i[0]; mem_p = wgpos[mem_i]
    assert map[8:] == 'xxxcccc' and mem_i == 3
    tmask = sum(1 << p for p in pos['t']) | (1 << 20)
    t1 = 1 << pos['t'][0]
    PL = 65536; OML = PL+8192; QL = OML+2048; DL = QL+2048
    CL = DL+32
    lds = max(lds, DL+96)
    scale = 128**-0.25
    c1 = scale*math.log2(math.e); cneg = -0.5*scale; ism = 8**-0.5
    A(HEADER.rstrip())
    A(f"; @launch grid=({nwg},1,1) block=({NW*64+64},1,1) lds={lds}")
    A('.amdgcn_target "amdgcn-amd-amdhsa--gfx950"')
    A(".text"); A(f".globl {NAME}"); A(".p2align 8"); A(f".type {NAME},@function"); A(f"{NAME}:")
    VO = [1,2,3,4]
    VOL = 5
    RA = [6,7,8,9]
    SEL = [10,11,12,13]
    CNEG, ONE = 14, 15
    ACC, X, W = 16, 20, 24
    RB, PA, A0, A1, BB, DEN, N0, N1, T0, T1, PAT, L16 = 28, 29, 30, 31, 32, 33, 34, 35, 36, 37, 38, 39
    OM = 40
    KR = 56
    CA, PRG, VOLP = 72, 73, 74
    PQ = 76
    TLV, TLL = 80, 81
    nv = 82 if tl else (80 if iw else 75)
    I("s_load_dwordx8 s[4:11], s[0:1], 0")
    I("s_load_dwordx4 s[12:15], s[0:1], 32")
    I("s_load_dwordx2 s[16:17], s[0:1], 48")
    if enc >= 0: fixed = 80
    if enc >= 70: pst = 2
    if stamps or fixed: I("s_memrealtime s[60:61]")
    I(f"s_cmp_ge_u32 s2, {nwg}")
    I("s_cbranch_scc1 L_end")
    I("v_subrev_u32 v0, 64, v0")
    I("v_ashrrev_i32 v20, 6, v0")
    I("v_and_b32 v21, 15, v0          ; n")
    I("v_readfirstlane_b32 s70, v20")
    I("v_bfe_u32 v22, v0, 4, 2        ; g")
    if map[8:] == "xxxcccc" and mem_i == 3:
        I("s_and_b32 s50, s2, 7"); I("s_lshr_b32 s18, s2, 4"); I("s_lshl3_add_u32 s50, s18, s50   ; head")
    else:
        I("s_mov_b32 s50, 0")
        for i,p in enumerate(wgpos):
            if i == mem_i: continue
            I(f"s_bfe_u32 s18, s2, {0x10000+i:#x}"); I(f"s_lshl_b32 s18, s18, {p-20}"); I("s_or_b32 s50, s50, s18")
    I(f"s_bfe_u32 s51, s2, {0x10000+mem_i:#x}      ; member")
    I(f"v_and_b32 v{L16}, 63, v0")
    I(f"v_lshlrev_b32 v{L16}, 4, v{L16}      ; lane*16")
    I("s_cmp_ge_i32 s70, 0")
    I("s_cbranch_scc1 L_stream")
    if cp0:
        I(f"s_and_b32 s19, s2, {8 | ((agg-1) << 4)}")
        I("s_cbranch_scc0 L_nopf")
        I("s_getpc_b64 s[24:25]")
        A("L_pc0:")
        I("s_and_b32 s19, s2, 48"); I(f"s_mul_i32 s19, s19, {cp0*128//16}")
        for j in range(cp0): I(f"s_load_dword s26, s[24:25], s19 offset:{128*(j+1)}")
        A("L_nopf:")
    I("s_lshl_b32 s18, s50, 10")
    I(f"s_mov_b32 s46, {1024+(agg-1)*8192}"); I("s_mov_b32 s47, 0x20000")
    for r in range(4): I(f"v_mov_b32 v{W+r}, -1")
    I(f"s_and_b32 s19, s2, {8 | ((agg-1) << 4)}")
    I("s_waitcnt lgkmcnt(0)")
    I("s_cbranch_scc1 L_h0")
    if pt:
        I("s_and_b32 s21, s2, 128"); I("s_mov_b32 s22, 0"); I("s_atomic_or s22, s[14:15], s21")
    I("s_add_u32 s44, s16, s18"); I("s_addc_u32 s45, s17, 0")
    if not (np & 1):
        for j in range(agg):
            if j: I(f"s_mov_b32 s18, {8192*j}")
            I(f"buffer_store_dwordx4 v[{W}:{W+3}], v{L16}, s[44:47], {'s18' if j else '0'} offen {sf}")
    if ci:
        assert agg == 8 and len(cpl) <= 8
        I("s_lshr_b32 s18, s50, 3"); I("s_and_b32 s20, s50, 7"); I("s_or_b32 s18, s18, s20"); I("s_lshl_b32 s18, s18, 10")
        I(f"s_add_u32 s44, s16, {CB:#x}"); I("s_addc_u32 s45, s17, 0")
        I(f"buffer_store_dwordx4 v[{W}:{W+3}], v{L16}, s[44:47], s18 offen {sf}")
    A("L_h0:")
    I("s_branch L_helper")
    A("L_stream:")
    if prio: I(f"s_setprio {prio}")
    I(f"s_lshl_b32 s3, s51, {mem_p}")
    if wr:
        assert pos['w'] == [12,13]
        I("s_lshl_b32 s83, s70, 12")
    elif pos['w'] == [12,13]:
        I("s_lshl_b32 s18, s70, 12"); I("s_or_b32 s3, s3, s18")
    else:
        for i,p in enumerate(pos['w']):
            I(f"s_bfe_u32 s18, s70, {0x10000+i:#x}"); I(f"s_lshl_b32 s18, s18, {p}"); I("s_or_b32 s3, s3, s18")
    I(f"v_add_u32 v{VOL}, s3, v{L16}")
    I("v_lshlrev_b32 v23, 6, v22      ; (4g)*16")
    I(f"v_xor_b32 v{VO[0]}, v{VOL}, v23")
    for c in range(1,4): I(f"v_xor_b32 v{VO[c]}, {16*c}, v{VO[0]}")
    I("s_lshl_b32 s71, s70, 14")
    I("s_lshl_b32 s19, s70, 10")
    if kf: I("s_mov_b32 s86, s19")
    I(f"s_add_u32 m0, s19, {OML}")
    I("s_mov_b32 s31, 0x20000"); I("s_movk_i32 s30, 256")
    I("s_lshl_b32 s18, s50, 20")
    I("s_lshl_b32 s55, s50, 8")
    I("s_mov_b32 s22, 0x100000"); I("s_mov_b32 s23, 0x20000")
    I(f"s_mov_b32 s48, {t1:#x}")
    I("s_waitcnt lgkmcnt(0)")
    I("s_add_u32 s4, s4, s55"); I("s_addc_u32 s5, s5, 0")
    I("s_cmp_lt_u32 s70, 2")
    I("s_cselect_b32 s28, s10, s4"); I("s_cselect_b32 s29, s11, s5"); I("s_cselect_b32 s30, 2048, s30"); I("s_cselect_b32 s19, s19, 0")
    if not kf and not (np & 16): I(f"buffer_load_dwordx4 v{L16}, s[28:31], s19 offen {qf} lds")
    if pst: I("s_memrealtime s[88:89]")
    I("s_mov_b32 m0, s71")
    I("s_add_u32 s20, s6, s18"); I("s_addc_u32 s21, s7, 0")
    def ld(c, so=None):
      if so is None: so = "s84" if wr else "s48"
      I(f"buffer_load_dwordx4 v{VO[c]}, s[20:23], {so} offen offset:{1024*c} {flags} lds")
    for c in range(4): ld(c, "s83" if wr else "0")
    if kf:
        I(f"s_add_u32 m0, s86, {OML}"); I("s_nop 0")
        I(f"buffer_load_dwordx4 v{L16}, s[28:31], s19 offen {qf} lds")
    I("s_or_b32 m0, s71, 0x1000")
    I("s_movk_i32 s73, 0x1000")
    def wrot():
        if wr == 1: I("s_xor_b32 s84, s83, s73"); I("s_or_b32 s84, s84, s48")
        elif wr == 2: I("s_lshr_b32 s84, s48, 4"); I("s_xor_b32 s84, s84, s83"); I("s_and_b32 s84, s84, 0x3000"); I("s_or_b32 s84, s84, s48")
    wrot()
    for c in range(ib-4): ld(c)
    if pst == 2: I("s_memrealtime s[90:91]")
    I("s_add_u32 s24, s8, s18"); I("s_addc_u32 s25, s9, 0")
    I("s_lshl_b32 s56, s50, 10")
    I("s_add_u32 s44, s16, s56"); I("s_addc_u32 s45, s17, 0"); I("s_movk_i32 s46, 1024"); I("s_mov_b32 s47, 0x20000")
    I("v_and_b32 v16, 3, v21"); I("v_lshlrev_b32 v16, 10, v16")
    I("v_lshrrev_b32 v17, 2, v21"); I("v_lshl_add_u32 v16, v17, 8, v16   ; kappa*256")
    I("v_xor_b32 v18, v22, v21"); I(f"v_lshl_add_u32 v{RB}, v18, 4, v16")
    I("v_lshlrev_b32 v17, 1, v17"); I("v_and_b32 v18, 1, v21"); I("v_add_u32 v17, v17, v18   ; m(i)")
    I(f"s_mov_b32 s58, {OML}")
    I(f"v_lshl_add_u32 v{RA[1]}, v22, 4, s58   ; g*16 + OML"); I(f"v_lshl_add_u32 v{RA[0]}, v17, 8, v{RA[1]}")
    I("s_lshl_b32 s59, s70, 11"); I(f"s_add_u32 s59, s59, {PL}")
    I(f"v_lshl_add_u32 v{PA}, v21, 2, s59")
    I("v_cmp_gt_u32 vcc, 8, v21")
    I("v_mov_b32 v16, 0x0100"); I("v_mov_b32 v17, 0x0302")
    I("v_cndmask_b32 v16, v16, v17, vcc")
    I("v_cmp_eq_u32 vcc, 0, v18")
    I("v_or_b32 v17, 0x0c0c0000, v16")
    I("v_lshlrev_b32 v16, 16, v16"); I("v_or_b32 v16, 0x0c0c, v16")
    I("v_cndmask_b32 v16, v16, v17, vcc")
    I("v_bfe_u32 v18, v21, 1, 2")
    I("v_mov_b32 v17, 0x0c0c0c0c")
    for q in range(4):
        I(f"v_cmp_eq_u32 vcc, {q}, v18"); I("s_nop 1"); I(f"v_cndmask_b32 v{SEL[q]}, v17, v16, vcc")
    I(f"v_mov_b32 v{CNEG}, {f2u(cneg):#x}")
    I(f"v_mov_b32 v{ONE}, 1.0")
    I(f"v_mov_b32 v{DEN}, 0")
    for r in range(4): I(f"v_mov_b32 v{ACC+r}, 0")
    I(f"s_mov_b32 s52, {f2u(c1):#x}"); I(f"s_mov_b32 s53, {f2u(ism):#x}"); I(f"s_mov_b32 s54, {f2u(1e-6):#x}")
    I("s_mov_b32 s74, 0x07060302")
    I("s_add_u32 s36, s12, s55"); I("s_addc_u32 s37, s13, 0"); I("s_movk_i32 s38, 256"); I("s_mov_b32 s39, 0x20000")
    if tl:
        I(f"v_and_b32 v{TLL}, 63, v0"); I(f"v_mov_b32 v{TLV}, 0"); I("s_mov_b32 s78, 0")
    I(f"v_mov_b32 v{PAT}, {pattern(l0):#x}"); I(f"v_mov_b32 v{PRG}, 1")
    if iw:
        for r in range(4): I(f"v_mov_b32 v{PQ+r}, 0")
    I("s_lshl_b32 s18, s70, 2"); I(f"s_add_u32 s18, s18, {CL+16}"); I(f"v_mov_b32 v{CA}, {CL}"); I(f"v_mov_b32 v{VOLP}, s18")
    if pst == 1: I("s_memrealtime s[90:91]")
    if not (np & 8): I(f"s_waitcnt vmcnt({ib-4 if kf else ib})")
    if pst: I("s_memrealtime s[92:93]")
    I("s_barrier")
    if pst: I("s_memrealtime s[94:95]"); I("s_waitcnt lgkmcnt(0)")
    for c in range(4): I(f"ds_read_b128 v[{OM+4*c}:{OM+4*c+3}], v{RA[0]} offset:{64*c}")
    for c in range(4): I(f"ds_read_b128 v[{KR+4*c}:{KR+4*c+3}], v{RA[1]} offset:{2048+64*c}")
    def proj():
        I(f"v_mov_b32 v{N0}, 0"); I(f"v_mov_b32 v{N1}, 0")
        for c in range(4):
            I(f"s_waitcnt lgkmcnt({3-c})")
            srcc = "0" if c == 0 else f"v[{X}:{X+3}]"
            I(f"v_mfma_f32_16x16x32_bf16 v[{X}:{X+3}], v[{OM+4*c}:{OM+4*c+3}], v[{KR+4*c}:{KR+4*c+3}], {srcc}")
            for j in range(4): I(f"v_dot2c_f32_bf16 v{N0+(j&1)}, v{KR+4*c+j}, v{KR+4*c+j}")
        I("s_nop 2")
        I(f"v_add_f32 v{N0}, v{N0}, v{N1}")
        I("s_nop 1")
        I(f"v_mfma_f32_16x16x4_f32 v[{X}:{X+3}], v{CNEG}, v{N0}, v[{X}:{X+3}]")
    if not (np & 8): proj()
    I("s_nop 9")
    I(f"v_mul_f32 v{A0}, s52, v{X}"); I(f"v_mul_f32 v{A1}, s52, v{X+1}")
    I(f"v_exp_f32 v{A0}, v{A0}"); I(f"v_exp_f32 v{A1}, v{A1}")
    I(f"v_mov_b32 v{T0}, s54")
    I(f"v_fma_f32 v{A0}, v{A0}, s53, v{T0}"); I(f"v_fma_f32 v{A1}, v{A1}, s53, v{T0}")
    I(f"v_add_f32 v{BB}, v{A0}, v{A1}"); I(f"v_mul_f32 v{BB}, s54, v{BB}")
    I(f"v_mul_f32 v{A0}, s53, v{A0}"); I(f"v_mul_f32 v{A1}, s53, v{A1}")
    for c in range(ib-4, 4):
        I("s_waitcnt vmcnt(4)"); ld(c)
    nlab = [0]
    def wait(lims, j):
        if j in so:
            nlab[0] += 1
            I(f"s_cmp_ge_u32 s80, {4*(so.index(j)+1)+neg}")
            I(f"s_cbranch_scc1 L_p{nlab[0]}")
            I(f"s_waitcnt vmcnt({lims[j]-1})")
            if neg and so.index(j) == 0:
                I(f"s_cmp_ge_u32 s80, {neg}")
                I(f"s_cbranch_scc1 L_p{nlab[0]}")
                I(f"s_waitcnt vmcnt({lims[j]-2})")
            A(f"L_p{nlab[0]}:")
        else: I(f"s_waitcnt vmcnt({lims[j]-1})")
    def top():
        if tl: I("s_memrealtime s[76:77]")
        if 0 <= enc < 64:
            nlab[0] += 1
            I("s_add_u32 s87, s87, 1"); I(f"s_cmp_lg_u32 s87, {enc+1}"); I(f"s_cbranch_scc1 L_e{nlab[0]}")
            I("s_memrealtime s[98:99]"); I("s_waitcnt lgkmcnt(0)"); A(f"L_e{nlab[0]}:")
        if iw:
            I(f"v_add3_u32 v{PQ}, v{PQ}, v{PQ+1}, v{PQ+2}")
            I(f"v_mad_i32_i24 v{PQ+3}, v{PRG}, -4, v{PQ+3}")
            I(f"v_add3_u32 v{PQ}, v{PQ}, v{PQ+3}, {io}")
            I(f"v_mad_i32_i24 v{PAT}, v{PQ}, {iw}, v{PAT}")
            I(f"v_max_i32 v{PAT}, 0, v{PAT}")
            I(f"v_add_u32 v{PRG}, 1, v{PRG}")
            I(f"v_readfirstlane_b32 s80, v{PAT}")
            I(f"ds_write_b32 v{VOLP}, v{PRG}")
            I(f"ds_read_b32 v{PAT}, v{CA}")
            I(f"ds_read_b128 v[{PQ}:{PQ+3}], v{CA} offset:16")
        else:
            I(f"v_readfirstlane_b32 s80, v{PAT}")
            I(f"v_add_u32 v{PRG}, 1, v{PRG}")
            I(f"ds_read_b32 v{PAT}, v{CA}")
            I(f"ds_write_b32 v{VOLP}, v{PRG}")
        I(f"s_or_b32 s48, s48, {(~tmask) & 0xffffffff:#x}"); I("s_add_u32 s48, s48, 1"); I(f"s_and_b32 s48, s48, {tmask:#x}")
        I("s_add_u32 s73, s73, 0x1000"); I("s_and_b32 s73, s73, 0x3000"); I("s_or_b32 m0, s71, s73"); I("s_xor_b32 s72, m0, 0x2000")
        I("s_lshr_b32 s81, s73, 12"); I("s_add_u32 s80, s80, s81")
        if tl:
            I("s_waitcnt lgkmcnt(0)"); I("s_sub_u32 s76, s76, s60"); I(f"v_mov_b32 v{T1}, s76"); I(f"v_cmp_eq_u32 vcc, s78, v{TLL}"); I("s_add_u32 s78, s78, 1"); I("s_nop 0")
            I(f"v_cndmask_b32 v{TLV}, v{TLV}, v{T1}, vcc")
    def kslot(lims):
        done = []; cur = -99
        for j in range(4):
            cur = max(cur, 8+j-lims[j]-(9 if j in slots else 0)); done.append(cur)
        return min(j for j in range(4) if done[j] >= 3)
    def k_addr():
        I(f"v_add_u32 v{RA[0]}, s72, v{RB}")
        for c in range(1,4): I(f"v_xor_b32 v{RA[c]}, {64*c}, v{RA[0]}")
    def k_read():
        for c in range(4): I(f"ds_read_b128 v[{KR+4*c}:{KR+4*c+3}], v{RA[c]}")
    def k_exp():
        I("s_nop 7")
        I(f"v_mul_f32 v{T0}, s52, v{X}"); I(f"v_mul_f32 v{T1}, s52, v{X+1}")
        I(f"v_exp_f32 v{T0}, v{T0}"); I(f"v_exp_f32 v{T1}, v{T1}")
        I("s_nop 0")
        I(f"v_fma_f32 v{T0}, v{A0}, v{T0}, v{BB}"); I(f"v_fma_f32 v{T0}, v{A1}, v{T1}, v{T0}")
        I(f"v_add_f32 v{DEN}, v{DEN}, v{T0}")
        I("s_nop 0")
        I(f"v_mfma_f32_16x16x4_f32 v[{W}:{W+3}], v{ONE}, v{T0}, 0")
    def k_pack():
        I("s_nop 7")
        I(f"v_and_b32 v{T0}, 0xffff0000, v{W}"); I(f"v_sub_f32 v{T0}, v{W}, v{T0}")
        I(f"v_perm_b32 v{T0}, v{W}, v{T0}, s74")
        I("s_mov_b64 exec, 0xffff")
        I(f"ds_write_b32 v{PA}, v{T0}")
        I("s_mov_b64 exec, -1")
        I(f"v_add_u32 v{PA}, 64, v{PA}")
    ks = kslot(klims)
    sched = {0: [k_read], 1: [proj], 2: [k_exp], 3: [k_pack]} if ks == 0 else {0: [], 1: [k_read, proj], 2: [k_exp], 3: [k_pack]}
    assert ks <= 1
    if sb: I("s_mov_b32 s86, 0")
    if enc >= 0: I("s_mov_b32 s87, 0")
    A("L_kloop:")
    top()
    I("s_cmp_lg_u32 s48, 0x100000")
    I("s_cbranch_scc1 L_kgo")
    I("s_mov_b32 s48, 0"); I("s_mov_b32 s20, s24"); I("s_mov_b32 s21, s25")
    for c in range(4): I(f"v_mov_b32 v{VO[c]}, v{VOL}")
    if sb: I(f"s_mov_b32 s86, {sb}")
    A("L_kgo:")
    if sb: I("s_max_u32 s80, s80, s86")
    wrot()
    k_addr()
    for j in range(4):
        wait(klims, j); ld(j)
        for f in sched[j]: f()
    I(f"s_cmp_lg_u32 s48, {t1:#x}")
    I("s_cbranch_scc1 L_kloop")
    def p_read():
        I(f"ds_read_b128 v[{W}:{W+3}], v{PA}")
        I(f"v_add_u32 v{PA}, 64, v{PA}")
    def perms(rs, w=True):
        if w: I("s_waitcnt lgkmcnt(0)")
        for r in rs:
            for q in range(4): I(f"v_perm_b32 v{OM+4*r+q}, v{W+r}, v{W+r}, v{SEL[q]}")
    A("L_switch:")
    I(f"v_bfe_u32 v{T0}, v0, 4, 2")
    I(f"v_lshl_add_u32 v{PA}, v{T0}, 4, s59")
    p_read()
    for sh in (8,4,2,1):
        I(f"v_add_f32 v{DEN}, v{DEN}, v{DEN} row_ror:{sh}"); I("s_nop 1")
    I(f"v_mfma_f32_16x16x4_f32 v[{X}:{X+3}], v{ONE}, v{DEN}, 0")
    perms(range(4))
    I("s_lshl_b32 s18, s70, 2"); I(f"s_add_u32 s18, s18, {DL}"); I(f"v_mov_b32 v{T0}, s18")
    I("s_mov_b64 exec, 1")
    I(f"ds_write_b32 v{T0}, v{X}")
    I("s_mov_b64 exec, -1")
    I(f"v_and_b32 v{T0}, 15, v0"); I(f"v_lshl_add_u32 v{RA[1]}, v{T0}, 5, s59"); I(f"v_bfe_u32 v{T0}, v0, 4, 1"); I(f"v_lshl_add_u32 v{RA[1]}, v{T0}, 4, v{RA[1]}")
    I(f"v_bfe_u32 v{T0}, v0, 5, 1"); I(f"v_lshl_add_u32 v{RA[1]}, v{T0}, 9, v{RA[1]}")
    I(f"s_mov_b32 s18, {PL}"); I(f"v_lshl_add_u32 v{RA[2]}, v0, 2, s18"); I(f"v_mov_b32 v{RA[3]}, {DL}")
    I(f"v_lshlrev_b32 v{A0}, 3, v0"); I(f"v_lshlrev_b32 v{A1}, 1, v0")
    vs = kslot(vlims)
    assert vs <= 1
    def v_mm():
        for r in range(4): I(f"ds_read_b128 v[{KR+4*r}:{KR+4*r+3}], v{RA[0]} offset:{1024*r}")
        for r in range(4):
            I(f"s_waitcnt lgkmcnt({3-r})")
            I(f"v_mfma_f32_16x16x32_bf16 v[{ACC}:{ACC+3}], v[{OM+4*r}:{OM+4*r+3}], v[{KR+4*r}:{KR+4*r+3}], v[{ACC}:{ACC+3}]")
        I(f"s_cmp_eq_u32 s48, {0x100000+t1:#x}")
        I("s_cbranch_scc1 L_done")
    if vs == 0: sched = {0: [v_mm], 1: [p_read], 2: [lambda: perms([0,1])], 3: [lambda: perms([2,3], False)]}
    else: sched = {0: [], 1: [v_mm, p_read], 2: [lambda: perms([0,1])], 3: [lambda: perms([2,3], False)]}
    A("L_vloop:")
    top()
    wrot()
    I(f"v_add_u32 v{RA[0]}, s72, v{L16}")
    for j in range(4):
        wait(vlims, j); ld(j)
        for f in sched[j]: f()
    I("s_branch L_vloop")
    A("L_done:")
    if stamps: I("s_memrealtime s[62:63]")
    if enc == 64: I("s_memrealtime s[98:99]")
    if wv:
        I("s_waitcnt lgkmcnt(0)"); I(f"v_mov_b32 v{T1}, s62"); I(f"ds_write_b32 v{VOLP}, v{T1} offset:16")
    if ts: I("s_memtime s[88:89]")
    I("s_nop 4")
    I("s_cmp_ge_u32 s70, 2")
    I(f"ds_write_b128 v{RA[1]}, v[{ACC}:{ACC+3}]")
    I("s_waitcnt lgkmcnt(0)")
    I("s_barrier")
    I("s_cbranch_scc1 L_end")
    if ts: I("s_memtime s[90:91]")
    for w in range(4): I(f"ds_read2st64_b32 v[{40+2*w}:{41+2*w}], v{RA[2]} offset0:{8*w} offset1:{8*w+2}")
    I(f"ds_read_b128 v[48:51], v{RA[3]}")
    I("s_waitcnt lgkmcnt(0)")
    I("v_pk_add_f32 v[40:41], v[40:41], v[42:43]"); I("v_pk_add_f32 v[44:45], v[44:45], v[46:47]")
    I("v_pk_add_f32 v[48:49], v[48:49], v[50:51]"); I("v_pk_add_f32 v[40:41], v[40:41], v[44:45]")
    I("v_add_f32 v43, v48, v49"); I("v_add_f32 v42, v40, v41")
    I("v_and_b32 v41, 0x7fffffff, v43"); I("v_mov_b32 v40, v42")
    if ts: I("s_memtime s[92:93]")
    I(f"buffer_atomic_swap_x2 v[40:41], v{A0}, s[44:47], 0 offen sc0")
    I("s_waitcnt vmcnt(0)")
    if ts: I("s_memtime s[94:95]")
    I("v_cmp_le_i32 vcc, 0, v41")
    I("s_and_saveexec_b64 s[56:57], vcc")
    I("s_cbranch_execz L_fin")
    I("v_add_f32 v43, v43, v41"); I("v_add_f32 v43, s54, v43"); I("v_rcp_f32 v44, v43"); I("v_add_f32 v42, v42, v40")
    I("v_fma_f32 v45, -v43, v44, 1.0"); I("v_fma_f32 v44, v45, v44, v44")
    I("v_mul_f32 v42, v42, v44")
    I("v_cvt_pk_bf16_f32 v42, v42, v42")
    I(f"buffer_store_short v42, v{A1}, s[36:39], 0 offen {oflags}")
    A("L_fin:")
    if fixed or stamps:
        I("s_mov_b64 exec, -1")
        I("s_cmp_lg_u32 s70, 0"); I("s_cbranch_scc1 L_end")
    if enc >= 0:
        if enc == 65: I("s_memrealtime s[98:99]")
        if enc >= 70: I(f"s_mov_b32 s98, s{88+2*(enc-70)}")
        I("s_waitcnt lgkmcnt(0)")
        I("s_sub_u32 s98, s98, s60")
        for lab, t in (("L_s1", 5500), ("L_s2", 7000)):
            A(lab+":")
            I("s_memrealtime s[68:69]"); I("s_waitcnt lgkmcnt(0)"); I("s_sub_u32 s68, s68, s60")
            I(f"s_cmp_lt_u32 s68, {t}"); I(f"s_cbranch_scc1 {lab}")
            if lab == "L_s1":
                if dg:
                    I("s_mov_b32 s40, s14"); I("s_mov_b32 s41, s15"); I("s_movk_i32 s42, 256"); I("s_mov_b32 s43, 0x20000")
                    mk = sum(1 << x for x in (0,1,2,3,4,5,6,8,10,14,30,46,62))
                    I(f"s_mov_b32 exec_lo, {mk & 0xffffffff:#x}"); I(f"s_mov_b32 exec_hi, {mk >> 32:#x}")
                    I(f"v_mbcnt_lo_u32_b32 v{TLL}, exec_lo, 0"); I(f"v_mbcnt_hi_u32_b32 v{TLL}, exec_hi, v{TLL}"); I(f"v_lshlrev_b32 v{TLL}, 2, v{TLL}")
                    I(f"buffer_atomic_add v{TLV}, v{TLL}, s[40:43], 0 offen offset:4")
                    I("s_mov_b64 exec, -1")
                if em == 'G':
                    I("s_and_b32 s99, s60, 0xfffff"); I("s_add_u32 s98, s98, s99"); I("s_atomic_add s99, s[14:15], 60")
                I(("s_atomic_add" if em == 's' else "s_atomic_umax") + " s98, s[14:15], 56"); I("s_waitcnt lgkmcnt(0)")
        I("s_mov_b32 s98, 0"); I("s_atomic_or s98, s[14:15], 56 glc"); I("s_waitcnt lgkmcnt(0)")
        if em == 'G':
            I("s_mov_b32 s99, 0"); I("s_atomic_or s99, s[14:15], 60 glc"); I("s_waitcnt lgkmcnt(0)"); I("s_lshr_b32 s99, s99, 8"); I("s_sub_u32 s98, s98, s99")
        I("s_mul_i32 s98, s98, 10")
        if em == 's': I("s_lshr_b32 s98, s98, 8")
        I(f"s_sub_i32 s98, s98, {eo*1000}"); I("s_max_i32 s98, s98, 0"); I("s_min_i32 s98, s98, 15000")
        I("s_add_u32 s60, s60, s98")
    if fixed:
        A("L_spin:")
        I("s_memrealtime s[68:69]"); I("s_waitcnt lgkmcnt(0)"); I("s_sub_u32 s68, s68, s60")
        I(f"s_cmp_lt_i32 s68, {fixed*100}"); I("s_cbranch_scc1 L_spin")
    if stamps:
        if ts:
            I("s_waitcnt vmcnt(0)"); I("s_memtime s[96:97]")
        I("s_memrealtime s[64:65]")
        I("s_getreg_b32 s66, hwreg(HW_REG_XCC_ID)"); I("s_getreg_b32 s67, hwreg(HW_REG_HW_ID)")
        I("s_waitcnt lgkmcnt(0)")
        I("s_mov_b32 s61, 0"); I("s_sub_u32 s63, s64, s62")
        if wv:
            I(f"ds_read_b128 v[40:43], v{CA} offset:32"); I("s_waitcnt lgkmcnt(0)")
            for r in range(4): I(f"v_readfirstlane_b32 s{88+2*r}, v{40+r}")
            I("s_nop 1")
            for r in (88,90,92,94): I(f"s_sub_u32 s{r}, s64, s{r}")
            I("s_pack_ll_b32_b16 s61, s88, s90"); I("s_pack_ll_b32_b16 s65, s92, s94")
        if pst:
            for r in (88,90,92,94): I(f"s_sub_u32 s{r}, s{r}, s60")
            I("s_pack_ll_b32_b16 s61, s88, s90"); I("s_pack_ll_b32_b16 s65, s92, s94")
        if ts:
            I("s_sub_u32 s96, s96, s94"); I("s_sub_u32 s94, s94, s92"); I("s_sub_u32 s92, s92, s90"); I("s_sub_u32 s90, s90, s88")
            I("s_pack_ll_b32_b16 s61, s90, s92"); I("s_pack_ll_b32_b16 s65, s94, s96")
        for j in range(8): I(f"v_mov_b32 v{20+j}, s{60+j}")
        I("s_add_u32 s44, s16, 0x100000"); I("s_addc_u32 s45, s17, 0"); I("s_mov_b32 s46, 0x100000")
        if tl:
            I("s_lshl_b32 s55, s2, 8"); I("s_add_u32 s55, s55, 0x80000"); I(f"v_lshlrev_b32 v{TLL}, 2, v{TLL}")
            I(f"buffer_store_dword v{TLV}, v{TLL}, s[44:47], s55 offen")
        I("s_lshl_b32 s55, s2, 5"); I("v_mov_b32 v14, 0"); I("s_mov_b64 exec, 1")
        I("buffer_store_dwordx4 v[20:23], v14, s[44:47], s55 offen")
        I("buffer_store_dwordx4 v[24:27], v14, s[44:47], s55 offen offset:16")
    A("L_end:")
    I("s_endpgm")
    A("L_helper:")
    I(f"v_mov_b32 v1, {CL}"); I(f"v_mov_b32 v2, {pattern(l0):#x}")
    for r in range(4): I(f"v_mov_b32 v{4+r}, 1")
    I("ds_write_b32 v1, v2"); I("ds_write_b128 v1, v[4:7] offset:16")
    I(f"s_add_u32 s16, s16, {CB:#x}"); I("s_addc_u32 s17, s17, 0")
    I("s_waitcnt lgkmcnt(0)")
    I("s_barrier")
    if not ci:
        I(f"s_cmp_ge_u32 s2, {8*len(cpl)}")
        I("s_cbranch_scc1 L_h1")
        I("s_lshl_b32 s18, s2, 8"); I("s_mov_b32 s20, 0")
        I("s_atomic_swap s20, s[16:17], s18")
    A("L_h1:")
    I(f"s_andn2_b32 s56, s50, {(agg-1)*8}")
    I("s_lshl_b32 s57, 1, s56"); I("s_lshr_b32 s56, s56, 5"); I("s_lshl_b32 s56, s56, 6")
    I("s_cmp_lg_u32 s19, 0")
    I("s_cbranch_scc1 L_h2")
    I("s_waitcnt vmcnt(0)")
    I("s_atomic_or s57, s[14:15], s56")
    A("L_h2:")
    if cw:
        I(f"s_sleep {cw}")
        I("s_getpc_b64 s[24:25]")
        A("L_pc:")
        I("s_sub_u32 s24, s24, L_pc-L_switch"); I("s_subb_u32 s25, s25, 0")
        for j in range(9): I(f"s_load_dword s{26+j}, s[24:25], {128*j}")
    if hop:
        I(f"s_sleep {hop}")
        I("s_mov_b64 exec, 0")
        I("s_branch L_hop0")
        A("L_hopend:")
        I("s_mov_b64 exec, -1")
    if tw:
        I("s_lshl_b32 s18, s50, 20"); I("s_add_u32 s8, s8, s18"); I("s_addc_u32 s9, s9, 0"); I("s_lshl_b32 s18, s50, 8")
        I("s_sleep 64")
        if tw & 1: I("s_load_dword s21, s[8:9], 0")
        if tw & 2: I("s_load_dword s22, s[12:13], s18")
    I("s_bfe_u32 s52, s2, 0x30003"); I("s_lshl_b32 s52, s52, 8")
    for i in range(4): I(f"s_mov_b32 s{80+i}, {sum(lvn[8*i+j] << (4*j) for j in range(8)):#x}")
    cm = sum(1 << x for x in cpl)
    I(f"s_mov_b32 s84, {cm & 0xffffffff:#x}"); I(f"s_mov_b32 s85, {cm >> 32:#x}")
    A("L_hl:")
    I("s_ff1_i32_b64 s53, s[84:85]")
    I("s_cmp_lt_i32 s53, 0")
    I("s_cbranch_scc1 L_hf")
    I("s_bitset0_b64 s[84:85], s53")
    I("s_lshl_b32 s53, s53, 2")
    A("L_hp:")
    I(f"s_sleep {slp}"); I("ds_read_b128 v[4:7], v1 offset:16"); I("s_waitcnt lgkmcnt(0)")
    I("v_add_u32 v4, v4, v5"); I("v_add3_u32 v4, v4, v6, v7"); I("s_nop 0"); I("v_readfirstlane_b32 s55, v4"); I("s_nop 1")
    I("s_cmp_lt_u32 s55, s53"); I("s_cbranch_scc1 L_hp")
    I("s_mov_b32 s55, 1"); I("s_atomic_add s55, s[16:17], s52 glc")
    I("s_add_u32 s52, s52, 2048")
    I("s_waitcnt lgkmcnt(0)")
    if ci: I("s_add_u32 s55, s55, 1")
    I("s_bitcmp1_b32 s55, 4"); I("s_cselect_b64 s[58:59], s[82:83], s[80:81]")
    I("s_lshl_b32 s55, s55, 2"); I("s_lshr_b64 s[58:59], s[58:59], s55"); I("s_and_b32 s58, s58, 15")
    I("v_mov_b32 v2, s58"); I("ds_write_b32 v1, v2")
    I("s_branch L_hl")
    A("L_hf:")
    if fchk:
        I("s_load_dword s20, s[14:15], s56")
        A("L_hf1:")
        I("s_waitcnt lgkmcnt(0)")
        I("s_and_b32 s20, s20, s57")
        I("s_cbranch_scc1 L_hx")
        I("s_sleep 16")
        I("s_atomic_or s20, s[14:15], s56 glc")
        I("s_branch L_hf1")
    A("L_hx:")
    if eb:
        I(f"s_sleep {slp}"); I("ds_read_b128 v[4:7], v1 offset:16"); I("s_waitcnt lgkmcnt(0)")
        I("v_add_u32 v4, v4, v5"); I("v_add3_u32 v4, v4, v6, v7"); I("s_nop 0"); I("v_readfirstlane_b32 s55, v4"); I("s_nop 1")
        I(f"s_cmp_lt_u32 s55, {4*eb}"); I("s_cbranch_scc1 L_hx")
        I(f"v_max_u32 v2, {el}, v2"); I("ds_write_b32 v1, v2")
    I("s_endpgm")
    A('.section .rodata,"a"'); A(".p2align 6"); A(f".amdhsa_kernel {NAME}")
    A(f"  .amdhsa_next_free_vgpr {nv}"); A("  .amdhsa_next_free_sgpr 100"); A(f"  .amdhsa_accum_offset {(nv+3)//4*4}")
    A("  .amdhsa_group_segment_fixed_size 0"); A("  .amdhsa_kernarg_size 56"); A("  .amdhsa_user_sgpr_count 2")
    A("  .amdhsa_user_sgpr_kernarg_segment_ptr 1"); A("  .amdhsa_system_sgpr_workgroup_id_x 1")
    A("  .amdhsa_float_denorm_mode_32 3")
    A(".end_amdhsa_kernel")
    if hop: L = add_hops(L)
    return "\n".join(L)+"\n"

if __name__ == "__main__":
    d = sys.argv[1]
    os.makedirs(d, exist_ok=True)
    for spec in sys.argv[2:]:
        kv = {}
        parts = spec.split(",")
        kv['map'] = parts[0]
        for t in parts[1:]:
            k, v = t.split("=")
            kv[k] = v if k in ('klims','vlims','lv','cps','so') else (int(v, 0) if v[0].isdigit() else v.replace("+", " "))
        name = spec.replace("=", "").replace(",", "_")
        open(f"{d}/{name}.s", "w").write(gen(**kv))
```

```python
import sys, struct, math, os
def f2u(x): return struct.unpack('<I', struct.pack('<f', x))[0]
HEADER = """; Kernarg layout for this problem (56 bytes, ptrs only, base s[0:1]):
;   offset  32: d_out     shape=(4, 32, 1, 128) dtype=bfloat16 (2 bytes/elem)
"""
NAME = "standalone__linear_kernel_rfa__decode_kernel"

def gen(tm="tctttt", flags="nt", stamps=0, fixed=0, tl=0, tag=0, ib=8, slp=3, ts=0, lv='0000123456789acf', l0=3,
        cps='9.18.27.36.44.51.56.60', so='312', neg=2, pst=0, wv=0, iw=2, io=2, enc=-1, em='s', eo=0, dg=0, nr=0, hop2=0, qfirst=1, peel=0):
    if dg: tl = 1
    if enc >= 0: fixed = 80
    if enc >= 70: pst = 2
    L = []; A = L.append
    def I(s): A("    "+s)
    def C(s): A("    ; "+s)
    so = [int(c) for c in str(so)]
    lv = str(lv); lv = "".join(ch*(32//len(lv)) for ch in lv); lvn = [int(ch, 16) for ch in lv]
    cpl = [int(x) for x in str(cps).split('.')]; assert len(cpl) <= 8
    tpos = [14+i for i,ch in enumerate(tm) if ch == 't']; mem_p = 14+tm.index('c')
    tmask = sum(1 << p for p in tpos) | (1 << 20); t1 = 1 << tpos[0]
    CB = 0x20000
    PL = 65536; OML = PL+8192; QL = OML+2048; DL = QL+2048; CL = DL+32
    lds = DL+96
    scale = 128**-0.25
    c1 = scale*math.log2(math.e); cneg = -0.5*scale; ism = 8**-0.5
    A(HEADER.rstrip())
    A(f"; @launch grid=(256,1,1) block=(320,1,1) lds={lds}")
    A('.amdgcn_target "amdgcn-amd-amdhsa--gfx950"')
    A(".text"); A(f".globl {NAME}"); A(".p2align 8"); A(f".type {NAME},@function"); A(f"{NAME}:")
    VO = [1,2,3,4]; VOL = 5; RA = [6,7,8,9]; SEL = [10,11,12,13]; CNEG, ONE = 14, 15
    ACC, X, W = 16, 20, 24
    RB, PA, A0, A1, BB, DEN, N0, N1, T0, T1, PAT, L16 = 28, 29, 30, 31, 32, 33, 34, 35, 36, 37, 38, 39
    OM = 40; KR = 56; CA, PRG, PGA = 72, 73, 74; PQ = 76; TLV, TLL = 80, 81
    nv = 82 if tl else 80
    I("s_load_dwordx8 s[4:11], s[0:1], 0        ; q, k, v, omega")
    I("s_load_dwordx4 s[12:15], s[0:1], 32")
    I("s_load_dwordx2 s[16:17], s[0:1], 48      ; ws")
    if stamps or fixed: I("s_memrealtime s[60:61]")
    I("v_readfirstlane_b32 s70, v0              ; 64 * wave")
    I("s_cmpk_ge_u32 s2, 256")
    I("s_cbranch_scc1 L_end")
    I(f"v_and_b32 v{L16}, 63, v0")
    I("s_and_b32 s50, s2, 7"); I("s_lshr_b32 s18, s2, 4"); I("s_lshl3_add_u32 s50, s18, s50            ; head")
    I(f"v_lshlrev_b32 v{L16}, 4, v{L16}              ; lane * 16")
    I("s_mov_b32 s23, 0x20000")
    I("s_sub_u32 s70, s70, 64")
    I("s_cbranch_scc0 L_stream")
    C("---- helper: 16 workgroups first reset the hand-off slots and the rank counters ----")
    I("s_and_b32 s19, s2, 0xe8")
    I("s_cbranch_scc1 L_helper")
    I("s_lshl_b32 s18, s50, 10")
    I(f"s_mov_b32 s22, {CB+0x4000:#x}")
    for r in range(4): I(f"v_mov_b32 v{W+r}, -1")
    I("s_waitcnt lgkmcnt(0)")
    I("s_mov_b64 s[20:21], s[16:17]")
    A("L_init:")
    I(f"buffer_store_dwordx4 v[{W}:{W+3}], v{L16}, s[20:23], s18 offen sc0 sc1")
    I("s_addk_i32 s18, 0x4000")
    I("s_cmp_lt_u32 s18, s22")
    I("s_cbranch_scc1 L_init")
    I("s_branch L_helper")
    A("L_stream:")
    I("s_setprio 3")
    I("s_and_b32 s3, s2, 8"); I(f"s_lshl_b32 s3, s3, {mem_p-3}               ; member bit")
    I("s_lshl_b32 s18, s70, 6"); I("s_or_b32 s3, s3, s18                     ; + wave * 4096")
    I(f"v_add_u32 v{VOL}, s3, v{L16}")
    I(f"v_and_b32 v23, 48, v0"); I("v_lshlrev_b32 v23, 2, v23                ; g * 64")
    I(f"v_xor_b32 v{VO[0]}, v{VOL}, v23")
    for c in range(1,4): I(f"v_xor_b32 v{VO[c]}, {16*c}, v{VO[0]}")
    I("s_lshl_b32 s71, s70, 8                   ; ring base of this wave")
    I("s_lshl_b32 s19, s70, 4")
    I(f"s_add_u32 {'m0' if qfirst else 's86'}, s19, {OML}")
    if not qfirst: I("s_mov_b32 m0, s71")
    I("s_mov_b32 s31, s23"); I("s_movk_i32 s30, 256")
    I("s_lshl_b32 s18, s50, 20"); I("s_lshl_b32 s55, s50, 8")
    I("s_mov_b32 s22, 0x100000")
    I(f"s_movk_i32 s48, {t1:#x}"); I("s_movk_i32 s73, 0x1000")
    I("s_cmpk_lt_u32 s70, 128")
    I("s_cselect_b32 s19, s19, s55"); I("s_cselect_b32 s30, 1024, s30")
    I("s_waitcnt lgkmcnt(0)")
    def ld(c, so_="s48"): I(f"buffer_load_dwordx4 v{VO[c]}, s[20:23], {so_} offen offset:{1024*c} {flags} lds")
    def qld():
        I("s_cselect_b64 s[28:29], s[10:11], s[4:5]")
        I("s_add_u32 s28, s28, s19"); I("s_addc_u32 s29, s29, 0")
    if qfirst:
        qld()
        I(f"buffer_load_dwordx4 v{L16}, s[28:31], 0 offen lds      ; omega halves (waves 0,1), q (waves 2,3)")
        if pst: I("s_memrealtime s[88:89]")
        I("s_mov_b32 m0, s71")
        I("s_add_u32 s20, s6, s18"); I("s_addc_u32 s21, s7, 0")
        for c in range(4): ld(c, "0")
    else:
        qld()
        I("s_add_u32 s20, s6, s18"); I("s_addc_u32 s21, s7, 0")
        ld(0, "0")
        if pst: I("s_memrealtime s[88:89]")
        I("s_mov_b32 m0, s86"); I("s_nop 0")
        I(f"buffer_load_dwordx4 v{L16}, s[28:31], 0 offen lds")
        I("s_mov_b32 m0, s71"); I("s_nop 0")
        for c in range(1,4): ld(c, "0")
    I("s_or_b32 m0, s71, s73")
    I("s_add_u32 s24, s8, s18")
    for c in range(ib-4): ld(c)
    if pst == 2: I("s_memrealtime s[90:91]")
    I("s_addc_u32 s25, s9, 0")
    A("L_burst_end:")
    I("v_subrev_u32 v0, 64, v0")
    I("v_and_b32 v21, 15, v0                    ; n"); I("v_bfe_u32 v22, v0, 4, 2                  ; g")
    I("v_and_b32 v16, 3, v21"); I("v_lshlrev_b32 v16, 10, v16")
    I("v_lshrrev_b32 v17, 2, v21"); I("v_lshl_add_u32 v16, v17, 8, v16          ; row(n) * 256")
    I("v_xor_b32 v18, v22, v21"); I(f"v_lshl_add_u32 v{RB}, v18, 4, v16")
    I("v_lshlrev_b32 v17, 1, v17"); I("v_and_b32 v18, 1, v21"); I("v_add_u32 v17, v17, v18")
    I("s_branch L_cont")
    A(f".fill (512 - (. - {NAME}))/4, 4, 0xbf800000")
    A("L_helper:")
    I(f"v_mov_b32 v1, {CL}"); I(f"v_mov_b32 v2, {l0}")
    for r in range(4): I(f"v_mov_b32 v{4+r}, 1")
    I("ds_write_b32 v1, v2"); I("ds_write_b128 v1, v[4:7] offset:16")
    if hop2:
        I("s_branch L_hopA")
        A("L_hopB:")
    I("s_waitcnt lgkmcnt(0)")
    I("s_barrier")
    I("s_branch L_control")
    A("L_cont:")
    I(f"s_mov_b32 s58, {OML}")
    I(f"v_lshl_add_u32 v{RA[1]}, v22, 4, s58"); I(f"v_lshl_add_u32 v{RA[0]}, v17, 8, v{RA[1]}")
    I("s_lshl_b32 s59, s70, 5"); I(f"s_add_u32 s59, s59, {PL}")
    I(f"v_lshl_add_u32 v{PA}, v21, 2, s59")
    I("v_cmp_gt_u32 vcc, 8, v21")
    I("v_mov_b32 v16, 0x0100"); I("v_mov_b32 v17, 0x0302")
    I("v_cndmask_b32 v16, v16, v17, vcc")
    I("v_cmp_eq_u32 vcc, 0, v18")
    I("v_or_b32 v17, 0x0c0c0000, v16")
    I("v_lshlrev_b32 v16, 16, v16"); I("v_or_b32 v16, 0x0c0c, v16")
    I("v_cndmask_b32 v16, v16, v17, vcc")
    I("v_bfe_u32 v18, v21, 1, 2")
    I("v_mov_b32 v17, 0x0c0c0c0c")
    for q in range(4):
        I(f"v_cmp_eq_u32 vcc, {q}, v18"); I(f"v_mov_b32 v{PQ+q}, 0"); I("s_nop 0"); I(f"v_cndmask_b32 v{SEL[q]}, v17, v16, vcc")
    I(f"v_mov_b32 v{CNEG}, {f2u(cneg):#x}")
    I(f"v_mov_b32 v{ONE}, 1.0")
    I(f"v_mov_b32 v{DEN}, 0")
    for r in range(4): I(f"v_mov_b32 v{ACC+r}, 0")
    I(f"s_mov_b32 s52, {f2u(c1):#x}"); I(f"s_mov_b32 s53, {f2u(ism):#x}"); I(f"s_mov_b32 s54, {f2u(1e-6):#x}")
    I("s_mov_b32 s74, 0x07060302")
    I(f"v_mov_b32 v{PAT}, {l0}"); I(f"v_mov_b32 v{PRG}, 1")
    I("s_lshr_b32 s75, s70, 4"); I(f"v_mov_b32 v{CA}, {CL}"); I(f"v_add_u32 v{PGA}, s75, v{CA}")
    if tl:
        I(f"v_and_b32 v{TLL}, 63, v0"); I(f"v_mov_b32 v{TLV}, 0"); I("s_mov_b32 s78, 0")
    if pst == 1: I("s_memrealtime s[90:91]")
    I(f"s_waitcnt vmcnt({ib if qfirst else ib-1})")
    if pst: I("s_memrealtime s[92:93]")
    I("s_barrier")
    if pst: I("s_memrealtime s[94:95]"); I("s_waitcnt lgkmcnt(0)")
    for c in range(4): I(f"ds_read_b128 v[{OM+4*c}:{OM+4*c+3}], v{RA[0]} offset:{64*c}")
    for c in range(4): I(f"ds_read_b128 v[{KR+4*c}:{KR+4*c+3}], v{RA[1]} offset:{2048+64*c}")
    def proj():
        I(f"v_mov_b32 v{N0}, 0"); I(f"v_mov_b32 v{N1}, 0")
        for c in range(4):
            I(f"s_waitcnt lgkmcnt({3-c})")
            srcc = "0" if c == 0 else f"v[{X}:{X+3}]"
            I(f"v_mfma_f32_16x16x32_bf16 v[{X}:{X+3}], v[{OM+4*c}:{OM+4*c+3}], v[{KR+4*c}:{KR+4*c+3}], {srcc}")
            for j in range(4): I(f"v_dot2c_f32_bf16 v{N0+(j&1)}, v{KR+4*c+j}, v{KR+4*c+j}")
        I("s_nop 2")
        I(f"v_add_f32 v{N0}, v{N0}, v{N1}")
        I("s_nop 1")
        I(f"v_mfma_f32_16x16x4_f32 v[{X}:{X+3}], v{CNEG}, v{N0}, v[{X}:{X+3}]")
    proj()
    I("s_add_u32 s36, s12, s55"); I("s_addc_u32 s37, s13, 0"); I("s_movk_i32 s38, 256"); I("s_mov_b32 s39, s23")
    I("s_lshl_b32 s56, s50, 10")
    I("s_add_u32 s44, s16, s56"); I("s_addc_u32 s45, s17, 0"); I("s_movk_i32 s46, 1024"); I("s_mov_b32 s47, s23")
    I(f"v_mov_b32 v{T0}, s54")
    I(f"v_mul_f32 v{A0}, s52, v{X}"); I(f"v_mul_f32 v{A1}, s52, v{X+1}")
    I(f"v_exp_f32 v{A0}, v{A0}"); I(f"v_exp_f32 v{A1}, v{A1}")
    I("s_nop 0")
    I(f"v_fma_f32 v{A0}, v{A0}, s53, v{T0}"); I(f"v_fma_f32 v{A1}, v{A1}, s53, v{T0}")
    I(f"v_add_f32 v{BB}, v{A0}, v{A1}"); I(f"v_mul_f32 v{BB}, s54, v{BB}")
    I(f"v_mul_f32 v{A0}, s53, v{A0}"); I(f"v_mul_f32 v{A1}, s53, v{A1}")
    for c in range(ib-4, 4):
        I("s_waitcnt vmcnt(4)"); ld(c)
    nlab = [0]
    def wait(j):
        if j in so:
            nlab[0] += 1
            I(f"s_cmp_ge_u32 s80, {4*(so.index(j)+1)+neg}")
            I(f"s_cbranch_scc1 L_p{nlab[0]}")
            I("s_waitcnt vmcnt(4)")
            if neg and so.index(j) == 0:
                I(f"s_cmp_ge_u32 s80, {neg}")
                I(f"s_cbranch_scc1 L_p{nlab[0]}")
                I("s_waitcnt vmcnt(3)")
            A(f"L_p{nlab[0]}:")
        else: I("s_waitcnt vmcnt(4)")
    def top():
        if tl: I("s_memrealtime s[76:77]")
        if 0 <= enc < 64:
            nlab[0] += 1
            I("s_add_u32 s87, s87, 1"); I(f"s_cmp_lg_u32 s87, {enc+1}"); I(f"s_cbranch_scc1 L_e{nlab[0]}")
            I("s_memrealtime s[98:99]"); I("s_waitcnt lgkmcnt(0)"); A(f"L_e{nlab[0]}:")
        I(f"v_add3_u32 v{PQ}, v{PQ}, v{PQ+1}, v{PQ+2}")
        I(f"v_mad_i32_i24 v{PQ+3}, v{PRG}, -4, v{PQ+3}")
        I(f"v_add3_u32 v{PQ}, v{PQ}, v{PQ+3}, {io}")
        I(f"v_mad_i32_i24 v{PAT}, v{PQ}, {iw}, v{PAT}")
        I(f"v_max_i32 v{PAT}, 0, v{PAT}")
        I(f"v_add_u32 v{PRG}, 1, v{PRG}")
        I(f"v_readfirstlane_b32 s80, v{PAT}")
        I(f"ds_write_b32 v{PGA}, v{PRG} offset:16")
        I(f"ds_read_b32 v{PAT}, v{CA}")
        I(f"ds_read_b128 v[{PQ}:{PQ+3}], v{CA} offset:16")
        I(f"s_or_b32 s48, s48, {(~tmask) & 0xffffffff:#x}"); I("s_add_u32 s48, s48, 1"); I(f"s_and_b32 s48, s48, {tmask:#x}")
        I("s_addk_i32 s73, 0x1000"); I("s_and_b32 s73, s73, 0x3000"); I("s_or_b32 m0, s71, s73"); I("s_xor_b32 s72, m0, 0x2000")
        I("s_lshr_b32 s81, s73, 12"); I("s_add_u32 s80, s80, s81")
        if tl:
            I("s_waitcnt lgkmcnt(0)"); I("s_sub_u32 s76, s76, s60"); I(f"v_mov_b32 v{T1}, s76"); I(f"v_cmp_eq_u32 vcc, s78, v{TLL}"); I("s_add_u32 s78, s78, 1"); I("s_nop 0")
            I(f"v_cndmask_b32 v{TLV}, v{TLV}, v{T1}, vcc")
    def k_read():
        for c in range(4): I(f"ds_read_b128 v[{KR+4*c}:{KR+4*c+3}], v{RA[c]}")
    def k_exp():
        I("s_nop 6")
        I(f"v_mul_f32 v{T0}, s52, v{X}"); I(f"v_mul_f32 v{T1}, s52, v{X+1}")
        I(f"v_exp_f32 v{T0}, v{T0}"); I(f"v_exp_f32 v{T1}, v{T1}")
        I("s_nop 0")
        I(f"v_fma_f32 v{T0}, v{A0}, v{T0}, v{BB}"); I(f"v_fma_f32 v{T0}, v{A1}, v{T1}, v{T0}")
        I(f"v_add_f32 v{DEN}, v{DEN}, v{T0}")
        I("s_nop 0")
        I(f"v_mfma_f32_16x16x4_f32 v[{W}:{W+3}], v{ONE}, v{T0}, 0")
    def k_pack():
        I("s_nop 6")
        I(f"v_and_b32 v{T0}, 0xffff0000, v{W}"); I(f"v_sub_f32 v{T0}, v{W}, v{T0}")
        I(f"v_perm_b32 v{T0}, v{W}, v{T0}, s74")
        I("s_mov_b64 exec, 0xffff")
        I(f"ds_write_b32 v{PA}, v{T0}")
        I("s_mov_b64 exec, -1")
        I(f"v_add_u32 v{PA}, 64, v{PA}")
    assert sorted(so) == [1,2,3]
    if enc >= 0: I("s_mov_b32 s87, 0")
    A("L_kloop:")
    top()
    I("s_cmp_lg_u32 s48, s22")
    I("s_cbranch_scc1 L_kgo")
    I("s_mov_b32 s48, 0"); I("s_mov_b64 s[20:21], s[24:25]")
    for c in range(4): I(f"v_mov_b32 v{VO[c]}, v{VOL}")
    A("L_kgo:")
    I(f"v_add_u32 v{RA[0]}, s72, v{RB}")
    for c in range(1,4): I(f"v_xor_b32 v{RA[c]}, {64*c}, v{RA[0]}")
    for j, f in enumerate((k_read, proj, k_exp, k_pack)):
        wait(j); ld(j); f()
    I(f"s_cmpk_lg_u32 s48, {t1:#x}")
    I("s_cbranch_scc1 L_kloop")
    def p_read():
        I(f"ds_read_b128 v[{W}:{W+3}], v{PA}")
        I(f"v_add_u32 v{PA}, 64, v{PA}")
    def perms(rs, w=True):
        if w: I("s_waitcnt lgkmcnt(0)")
        for r in rs:
            for q in range(4): I(f"v_perm_b32 v{OM+4*r+q}, v{W+r}, v{W+r}, v{SEL[q]}")
    A("L_switch:")
    I(f"v_and_b32 v{T0}, 48, v0")
    I(f"v_add_u32 v{PA}, s59, v{T0}")
    p_read()
    I(f"v_add_f32 v{DEN}, v{DEN}, v{DEN} row_ror:8")
    I(f"v_and_b32 v{T0}, 15, v0"); I(f"v_lshl_add_u32 v{RA[1]}, v{T0}, 5, s59")
    I(f"v_add_f32 v{DEN}, v{DEN}, v{DEN} row_ror:4")
    I(f"v_and_b32 v{T0}, 16, v0"); I(f"v_add_u32 v{RA[1]}, v{T0}, v{RA[1]}")
    I(f"v_add_f32 v{DEN}, v{DEN}, v{DEN} row_ror:2")
    I(f"v_and_b32 v{T0}, 32, v0"); I(f"v_lshl_add_u32 v{RA[1]}, v{T0}, 4, v{RA[1]}")
    I(f"v_add_f32 v{DEN}, v{DEN}, v{DEN} row_ror:1")
    I(f"v_lshlrev_b32 v{A0}, 3, v0"); I(f"v_lshlrev_b32 v{A1}, 1, v0")
    I(f"v_mfma_f32_16x16x4_f32 v[{X}:{X+3}], v{ONE}, v{DEN}, 0")
    I(f"v_lshlrev_b32 v{RA[2]}, 2, v0"); I(f"v_add_u32 v{RA[2]}, {PL}, v{RA[2]}")
    I(f"v_subrev_u32 v{T0}, 32, v{PGA}"); I(f"v_subrev_u32 v{RA[3]}, 32, v{CA}")
    perms(range(4))
    I(f"ds_write_b32 v{T0}, v{X}")
    def v_mm():
        for r in range(4): I(f"ds_read_b128 v[{KR+4*r}:{KR+4*r+3}], v{RA[0]} offset:{1024*r}")
        for r in range(4):
            I(f"s_waitcnt lgkmcnt({3-r})")
            I(f"v_mfma_f32_16x16x32_bf16 v[{ACC}:{ACC+3}], v[{OM+4*r}:{OM+4*r+3}], v[{KR+4*r}:{KR+4*r+3}], v[{ACC}:{ACC+3}]")
        if not peel:
            I(f"s_cmp_eq_u32 s48, {0x100000+t1:#x}")
            I("s_cbranch_scc1 L_done")
    A("L_vloop:")
    top()
    I(f"v_add_u32 v{RA[0]}, s72, v{L16}")
    for j, f in enumerate((v_mm, p_read, lambda: perms([0,1]), lambda: perms([2,3], False))):
        wait(j); ld(j); f()
    if not peel:
        I("s_branch L_vloop")
    else:
        I("s_cmp_lg_u32 s48, s22")
        I("s_cbranch_scc1 L_vloop")
        I(f"v_xor_b32 v{RA[0]}, 0x1000, v{RA[0]}")
        I("s_waitcnt vmcnt(5)")
        for r in range(3): I(f"ds_read_b128 v[{KR+4*r}:{KR+4*r+3}], v{RA[0]} offset:{1024*r}")
        for r in range(3):
            I(f"s_waitcnt lgkmcnt({2-r})")
            I(f"v_mfma_f32_16x16x32_bf16 v[{ACC}:{ACC+3}], v[{OM+4*r}:{OM+4*r+3}], v[{KR+4*r}:{KR+4*r+3}], v[{ACC}:{ACC+3}]")
        I("s_waitcnt vmcnt(4)")
        I(f"ds_read_b128 v[{KR+12}:{KR+15}], v{RA[0]} offset:3072")
        I("s_waitcnt lgkmcnt(0)")
        I(f"v_mfma_f32_16x16x32_bf16 v[{ACC}:{ACC+3}], v[{OM+12}:{OM+15}], v[{KR+12}:{KR+15}], v[{ACC}:{ACC+3}]")
        I("s_nop 1")
    A("L_done:")
    if stamps: I("s_memrealtime s[62:63]")
    if enc == 64: I("s_memrealtime s[98:99]")
    if wv:
        I("s_waitcnt lgkmcnt(0)"); I(f"v_mov_b32 v{T1}, s62"); I(f"ds_write_b32 v{PGA}, v{T1} offset:32")
    if ts: I("s_memtime s[88:89]")
    I("s_nop 4")
    I("s_cmpk_ge_u32 s70, 128")
    I(f"ds_write_b128 v{RA[1]}, v[{ACC}:{ACC+3}]")
    I("s_waitcnt lgkmcnt(0)")
    I("s_barrier")
    I("s_cbranch_scc1 L_end")
    if ts: I("s_memtime s[90:91]")
    I(f"ds_read_b128 v[48:51], v{RA[3]}")
    for w in range(4): I(f"ds_read2st64_b32 v[{40+2*w}:{41+2*w}], v{RA[2]} offset0:{8*w} offset1:{8*w+2}")
    I("s_waitcnt lgkmcnt(2)" if not ts else "s_waitcnt lgkmcnt(0)")
    I("v_pk_add_f32 v[48:49], v[48:49], v[50:51]"); I("v_pk_add_f32 v[40:41], v[40:41], v[42:43]")
    I("v_add_f32 v53, v48, v49")
    I("s_waitcnt lgkmcnt(0)")
    I("v_pk_add_f32 v[44:45], v[44:45], v[46:47]")
    I("v_and_b32 v43, 0x7fffffff, v53")
    I("v_pk_add_f32 v[40:41], v[40:41], v[44:45]")
    I("v_add_f32 v42, v40, v41")
    if ts: I("s_memtime s[92:93]")
    I(f"buffer_atomic_swap_x2 v[42:43], v{A0}, s[44:47], 0 offen sc0")
    I("v_add_f32 v52, v40, v41")
    I("s_waitcnt vmcnt(0)")
    if ts: I("s_memtime s[94:95]")
    I("v_cmp_le_i32 vcc, 0, v43")
    I("v_pk_add_f32 v[42:43], v[42:43], v[52:53]")
    I("s_and_saveexec_b64 s[56:57], vcc")
    I("s_cbranch_execz L_fin")
    I("v_add_f32 v43, s54, v43"); I("v_rcp_f32 v44, v43"); I("s_nop 0")
    if nr: I("v_fma_f32 v45, -v43, v44, 1.0"); I("v_fma_f32 v44, v45, v44, v44")
    I("v_mul_f32 v42, v42, v44")
    I("v_cvt_pk_bf16_f32 v42, v42, v42")
    I(f"buffer_store_short v42, v{A1}, s[36:39], 0 offen")
    A("L_fin:")
    if fixed or stamps:
        I("s_mov_b64 exec, -1")
        I("s_cmp_lg_u32 s70, 0"); I("s_cbranch_scc1 L_end")
    if enc >= 0:
        if enc == 65: I("s_memrealtime s[98:99]")
        if enc >= 70: I(f"s_mov_b32 s98, s{88+2*(enc-70)}")
        I("s_waitcnt lgkmcnt(0)")
        I("s_sub_u32 s98, s98, s60")
        for lab, t in (("L_s1", 5500), ("L_s2", 7000)):
            A(lab+":")
            I("s_memrealtime s[68:69]"); I("s_waitcnt lgkmcnt(0)"); I("s_sub_u32 s68, s68, s60")
            I(f"s_cmp_lt_u32 s68, {t}"); I(f"s_cbranch_scc1 {lab}")
            if lab == "L_s1":
                if dg:
                    I("s_mov_b32 s40, s14"); I("s_mov_b32 s41, s15"); I("s_movk_i32 s42, 256"); I("s_mov_b32 s43, 0x20000")
                    mk = sum(1 << x for x in (0,1,2,3,4,5,6,8,10,14,30,46,62))
                    I(f"s_mov_b32 exec_lo, {mk & 0xffffffff:#x}"); I(f"s_mov_b32 exec_hi, {mk >> 32:#x}")
                    I(f"v_mbcnt_lo_u32_b32 v{TLL}, exec_lo, 0"); I(f"v_mbcnt_hi_u32_b32 v{TLL}, exec_hi, v{TLL}"); I(f"v_lshlrev_b32 v{TLL}, 2, v{TLL}")
                    I(f"buffer_atomic_add v{TLV}, v{TLL}, s[40:43], 0 offen offset:4")
                    I("s_mov_b64 exec, -1")
                if em == 'G':
                    I("s_and_b32 s99, s60, 0xfffff"); I("s_add_u32 s98, s98, s99"); I("s_atomic_add s99, s[14:15], 60")
                I(("s_atomic_add" if em == 's' else "s_atomic_umax") + " s98, s[14:15], 56"); I("s_waitcnt lgkmcnt(0)")
        I("s_mov_b32 s98, 0"); I("s_atomic_or s98, s[14:15], 56 glc"); I("s_waitcnt lgkmcnt(0)")
        if em == 'G':
            I("s_mov_b32 s99, 0"); I("s_atomic_or s99, s[14:15], 60 glc"); I("s_waitcnt lgkmcnt(0)"); I("s_lshr_b32 s99, s99, 8"); I("s_sub_u32 s98, s98, s99")
        I("s_mul_i32 s98, s98, 10")
        if em == 's': I("s_lshr_b32 s98, s98, 8")
        I(f"s_sub_i32 s98, s98, {eo*1000}"); I("s_max_i32 s98, s98, 0"); I("s_min_i32 s98, s98, 15000")
        I("s_add_u32 s60, s60, s98")
    if fixed:
        A("L_spin:")
        I("s_memrealtime s[68:69]"); I("s_waitcnt lgkmcnt(0)"); I("s_sub_u32 s68, s68, s60")
        I(f"s_cmp_lt_i32 s68, {fixed*100}"); I("s_cbranch_scc1 L_spin")
    if stamps:
        if ts:
            I("s_waitcnt vmcnt(0)"); I("s_memtime s[96:97]")
        I("s_memrealtime s[64:65]")
        I("s_getreg_b32 s66, hwreg(HW_REG_XCC_ID)"); I("s_getreg_b32 s67, hwreg(HW_REG_HW_ID)")
        I("s_waitcnt lgkmcnt(0)")
        I("s_mov_b32 s61, 0"); I("s_sub_u32 s63, s64, s62")
        if wv:
            I(f"ds_read_b128 v[40:43], v{CA} offset:32"); I("s_waitcnt lgkmcnt(0)")
            for r in range(4): I(f"v_readfirstlane_b32 s{88+2*r}, v{40+r}")
            I("s_nop 1")
            for r in (88,90,92,94): I(f"s_sub_u32 s{r}, s64, s{r}")
            I("s_pack_ll_b32_b16 s61, s88, s90"); I("s_pack_ll_b32_b16 s65, s92, s94")
        if pst:
            for r in (88,90,92,94): I(f"s_sub_u32 s{r}, s{r}, s60")
            I("s_pack_ll_b32_b16 s61, s88, s90"); I("s_pack_ll_b32_b16 s65, s92, s94")
        if ts:
            I("s_sub_u32 s96, s96, s94"); I("s_sub_u32 s94, s94, s92"); I("s_sub_u32 s92, s92, s90"); I("s_sub_u32 s90, s90, s88")
            I("s_pack_ll_b32_b16 s61, s90, s92"); I("s_pack_ll_b32_b16 s65, s94, s96")
        for j in range(8): I(f"v_mov_b32 v{20+j}, s{60+j}")
        I("s_add_u32 s44, s16, 0x100000"); I("s_addc_u32 s45, s17, 0"); I("s_mov_b32 s46, 0x100000")
        if tl:
            I("s_lshl_b32 s55, s2, 8"); I("s_add_u32 s55, s55, 0x80000"); I(f"v_lshlrev_b32 v{TLL}, 2, v{TLL}")
            I(f"buffer_store_dword v{TLV}, v{TLL}, s[44:47], s55 offen")
        I("s_lshl_b32 s55, s2, 5"); I("v_mov_b32 v14, 0"); I("s_mov_b64 exec, 1")
        I("buffer_store_dwordx4 v[20:23], v14, s[44:47], s55 offen")
        I("buffer_store_dwordx4 v[24:27], v14, s[44:47], s55 offen offset:16")
    A("L_end:")
    I("s_endpgm")
    if hop2:
        A("L_hopA:")
        I("s_branch L_hopB")
    A("L_control:")
    I("s_and_b32 s57, s50, 15"); I("s_lshl_b32 s57, 1, s57")
    I("s_cmp_lg_u32 s19, 0")
    I("s_cbranch_scc1 L_h2")
    I("s_waitcnt vmcnt(0)")
    I("s_atomic_or s57, s[14:15], 0")
    A("L_h2:")
    I("s_bfe_u32 s52, s2, 0x30003"); I("s_lshl_b32 s52, s52, 8"); I(f"s_add_u32 s52, s52, {CB:#x}")
    for i in range(4): I(f"s_mov_b32 s{80+i}, {sum(lvn[8*i+j] << (4*j) for j in range(8)):#x}")
    cm = sum(1 << x for x in cpl)
    I(f"s_mov_b32 s84, {cm & 0xffffffff:#x}"); I(f"s_mov_b32 s85, {cm >> 32:#x}")
    A("L_hl:")
    I("s_ff1_i32_b64 s53, s[84:85]")
    I("s_cmp_lt_i32 s53, 0")
    I("s_cbranch_scc1 L_hf")
    I("s_bitset0_b64 s[84:85], s53")
    I("s_lshl_b32 s53, s53, 2")
    A("L_hp:")
    I(f"s_sleep {slp}"); I("ds_read_b128 v[4:7], v1 offset:16"); I("s_waitcnt lgkmcnt(0)")
    I("v_add_u32 v4, v4, v5"); I("v_add3_u32 v4, v4, v6, v7"); I("s_nop 0"); I("v_readfirstlane_b32 s55, v4"); I("s_nop 1")
    I("s_cmp_lt_u32 s55, s53"); I("s_cbranch_scc1 L_hp")
    I("s_mov_b32 s55, 1"); I("s_atomic_add s55, s[16:17], s52 glc")
    I("s_waitcnt lgkmcnt(0)")
    I("s_addk_i32 s52, 2048")
    I("s_add_u32 s55, s55, 1")
    I("s_bitcmp1_b32 s55, 4"); I("s_cselect_b64 s[58:59], s[82:83], s[80:81]")
    I("s_lshl_b32 s55, s55, 2"); I("s_lshr_b64 s[58:59], s[58:59], s55"); I("s_and_b32 s58, s58, 15")
    I("v_mov_b32 v2, s58"); I("ds_write_b32 v1, v2")
    I("s_branch L_hl")
    A("L_hf:")
    I("s_load_dword s20, s[14:15], 0")
    A("L_hf1:")
    I("s_waitcnt lgkmcnt(0)")
    I("s_and_b32 s20, s20, s57")
    I("s_cbranch_scc1 L_hx")
    I("s_sleep 16")
    I("s_atomic_or s20, s[14:15], 0 glc")
    I("s_branch L_hf1")
    A("L_hx:")
    I("s_endpgm")
    A('.section .rodata,"a"'); A(".p2align 6"); A(f".amdhsa_kernel {NAME}")
    A(f"  .amdhsa_next_free_vgpr {nv}"); A(f"  .amdhsa_next_free_sgpr {100 if (stamps or fixed) else 88}"); A(f"  .amdhsa_accum_offset {(nv+3)//4*4}")
    A("  .amdhsa_group_segment_fixed_size 0"); A("  .amdhsa_kernarg_size 56"); A("  .amdhsa_user_sgpr_count 2")
    A("  .amdhsa_user_sgpr_kernarg_segment_ptr 1"); A("  .amdhsa_system_sgpr_workgroup_id_x 1")
    A("  .amdhsa_float_denorm_mode_32 3")
    A(".end_amdhsa_kernel")
    return "\n".join(L)+"\n"

if __name__ == "__main__":
    d = sys.argv[1]
    os.makedirs(d, exist_ok=True)
    for spec in sys.argv[2:]:
        kv = {}
        for t in spec.split(","):
            if not t or t == "base": continue
            k, v = t.split("=")
            kv[k] = v if k in ('lv','cps','so','tm','em') else (int(v, 0) if v[0].isdigit() else v.replace("+", " "))
        name = "v10xxxxxxxxxxxx_" + spec.replace("=", "").replace(",", "_")
        open(f"{d}/{name}.s", "w").write(gen(**kv))
```

```python
import sys, struct, math, os
def f2u(x): return struct.unpack('<I', struct.pack('<f', x))[0]
HEADER = """; Kernarg layout for this problem (56 bytes, ptrs only, base s[0:1]):
;   offset  32: d_out     shape=(4, 32, 1, 128) dtype=bfloat16 (2 bytes/elem)
"""
NAME = "standalone__linear_kernel_rfa__decode_kernel"

def gen(tm="tctttt", flags="nt", stamps=0, fixed=0, tl=0, tag=0, ib=8, slp=3, ts=0, lv='0001123456789bdf', l0=3,
        cps='9.18.27.36.44.51.56.60', so='312', neg=2, pst=0, wv=0, iw=2, io=2, enc=-1, em='s', eo=0, dg=0, nr=0, hop2=0, qfirst=1, peel=1, qa=1, ack=1):
    if dg: tl = 1
    if enc >= 0: fixed = 80
    if enc >= 70: pst = 2
    L = []; A = L.append
    def I(s): A("    "+s)
    def C(s): A("    ; "+s)
    so = [int(c) for c in str(so)]
    lv = str(lv); lv = "".join(ch*(32//len(lv)) for ch in lv); lvn = [int(ch, 16) for ch in lv]
    cpl = [int(x) for x in str(cps).split('.')]; assert len(cpl) <= 8
    tpos = [14+i for i,ch in enumerate(tm) if ch == 't']; mem_p = 14+tm.index('c')
    tmask = sum(1 << p for p in tpos) | (1 << 20); t1 = 1 << tpos[0]
    CB = 0x20000
    PL = 65536; OML = PL+8192; QL = OML+2048; DL = QL+2048; CL = DL+32
    lds = DL+96
    scale = 128**-0.25
    c1 = scale*math.log2(math.e); cneg = -0.5*scale; ism = 8**-0.5
    A(HEADER.rstrip())
    A(f"; @launch grid=(256,1,1) block=(320,1,1) lds={lds}")
    A('.amdgcn_target "amdgcn-amd-amdhsa--gfx950"')
    A(".text"); A(f".globl {NAME}"); A(".p2align 8"); A(f".type {NAME},@function"); A(f"{NAME}:")
    VO = [1,2,3,4]; VOL = 5; RA = [6,7,8,9]; SEL = [10,11,12,13]; CNEG, ONE = 14, 15
    ACC, X, W = 16, 20, 24
    RB, PA, A0, A1, BB, DEN, N0, N1, T0, T1, PAT, L16 = 28, 29, 30, 31, 32, 33, 34, 35, 36, 37, 38, 39
    OM = 40; KR = 56; CA, PRG, PGA = 72, 73, 74; PQ = 76; TLV, TLL = 80, 81
    nv = 82 if tl else 80
    I("s_load_dwordx8 s[4:11], s[0:1], 0        ; q, k, v, omega")
    I("s_load_dwordx4 s[12:15], s[0:1], 32")
    I("s_load_dwordx2 s[16:17], s[0:1], 48      ; ws")
    if stamps or fixed: I("s_memrealtime s[60:61]")
    I("v_readfirstlane_b32 s70, v0              ; 64 * wave")
    I("s_cmpk_ge_u32 s2, 256")
    I("s_cbranch_scc1 L_end")
    I(f"v_and_b32 v{L16}, 63, v0")
    I("s_and_b32 s50, s2, 7"); I("s_lshr_b32 s18, s2, 4"); I("s_lshl3_add_u32 s50, s18, s50            ; head")
    I(f"v_lshlrev_b32 v{L16}, 4, v{L16}              ; lane * 16")
    I("s_mov_b32 s23, 0x20000")
    I("s_sub_u32 s70, s70, 64")
    I("s_cbranch_scc0 L_stream")
    C("---- helper: 16 workgroups first reset the hand-off slots and the rank counters ----")
    I("s_and_b32 s19, s2, 0xe8")
    I("s_cbranch_scc1 L_helper")
    I("s_lshl_b32 s18, s50, 10")
    I(f"s_mov_b32 s22, {CB+0x4000:#x}")
    for r in range(4): I(f"v_mov_b32 v{W+r}, -1")
    I("s_waitcnt lgkmcnt(0)")
    I("s_mov_b64 s[20:21], s[16:17]")
    A("L_init:")
    I(f"buffer_store_dwordx4 v[{W}:{W+3}], v{L16}, s[20:23], s18 offen sc0 sc1")
    I("s_addk_i32 s18, 0x4000")
    I("s_cmp_lt_u32 s18, s22")
    I("s_cbranch_scc1 L_init")
    I("s_branch L_helper")
    A("L_stream:")
    I("s_setprio 3")
    I("s_and_b32 s3, s2, 8"); I(f"s_lshl_b32 s3, s3, {mem_p-3}               ; member bit")
    I("s_lshl_b32 s18, s70, 6"); I("s_or_b32 s3, s3, s18                     ; + wave * 4096")
    I(f"v_add_u32 v{VOL}, s3, v{L16}")
    I(f"v_and_b32 v23, 48, v0"); I("v_lshlrev_b32 v23, 2, v23                ; g * 64")
    I(f"v_xor_b32 v{VO[0]}, v{VOL}, v23")
    for c in range(1,4): I(f"v_xor_b32 v{VO[c]}, {16*c}, v{VO[0]}")
    I("s_lshl_b32 s71, s70, 8                   ; ring base of this wave")
    I("s_lshl_b32 s19, s70, 4")
    I(f"s_add_u32 {'m0' if qfirst else 's86'}, s19, {OML}")
    if not qfirst: I("s_mov_b32 m0, s71")
    I("s_mov_b32 s31, s23"); I("s_movk_i32 s30, 256")
    I("s_lshl_b32 s18, s50, 20"); I("s_lshl_b32 s55, s50, 8")
    I("s_mov_b32 s22, 0x100000")
    I(f"s_movk_i32 s48, {t1:#x}"); I("s_movk_i32 s73, 0x1000")
    I("s_cmpk_lt_u32 s70, 128")
    I("s_cselect_b32 s19, s19, s55"); I("s_cselect_b32 s30, 1024, s30")
    I("s_waitcnt lgkmcnt(0)")
    def ld(c, so_="s48"): I(f"buffer_load_dwordx4 v{VO[c]}, s[20:23], {so_} offen offset:{1024*c} {flags} lds")
    def qld():
        I("s_cselect_b64 s[28:29], s[10:11], s[4:5]")
        I("s_add_u32 s28, s28, s19"); I("s_addc_u32 s29, s29, 0")
    if qfirst:
        qld()
        I(f"buffer_load_dwordx4 v{L16}, s[28:31], 0 offen lds      ; omega halves (waves 0,1), q (waves 2,3)")
        if pst: I("s_memrealtime s[88:89]")
        I("s_mov_b32 m0, s71")
        I("s_add_u32 s20, s6, s18"); I("s_addc_u32 s21, s7, 0")
        for c in range(4): ld(c, "0")
    else:
        qld()
        I("s_add_u32 s20, s6, s18"); I("s_addc_u32 s21, s7, 0")
        for c in range(qa): ld(c, "0")
        if pst: I("s_memrealtime s[88:89]")
        I("s_mov_b32 m0, s86"); I("s_nop 0")
        I(f"buffer_load_dwordx4 v{L16}, s[28:31], 0 offen lds")
        I("s_mov_b32 m0, s71"); I("s_nop 0")
        for c in range(qa,4): ld(c, "0")
    I("s_or_b32 m0, s71, s73")
    I("s_add_u32 s24, s8, s18")
    for c in range(ib-4): ld(c)
    if pst == 2: I("s_memrealtime s[90:91]")
    I("s_addc_u32 s25, s9, 0")
    A("L_burst_end:")
    I("v_subrev_u32 v0, 64, v0")
    I("v_and_b32 v21, 15, v0                    ; n"); I("v_bfe_u32 v22, v0, 4, 2                  ; g")
    I("v_and_b32 v16, 3, v21"); I("v_lshlrev_b32 v16, 10, v16")
    I("v_lshrrev_b32 v17, 2, v21"); I("v_lshl_add_u32 v16, v17, 8, v16          ; row(n) * 256")
    I("v_xor_b32 v18, v22, v21"); I(f"v_lshl_add_u32 v{RB}, v18, 4, v16")
    I("v_lshlrev_b32 v17, 1, v17"); I("v_and_b32 v18, 1, v21"); I("v_add_u32 v17, v17, v18")
    I("s_branch L_cont")
    A(f".fill (512 - (. - {NAME}))/4, 4, 0xbf800000")
    A("L_helper:")
    I(f"v_mov_b32 v1, {CL}"); I(f"v_mov_b32 v2, {l0}")
    for r in range(4): I(f"v_mov_b32 v{4+r}, 1")
    I("ds_write_b32 v1, v2"); I("ds_write_b128 v1, v[4:7] offset:16")
    if hop2:
        I("s_branch L_hopA")
        A("L_hopB:")
    I("s_waitcnt lgkmcnt(0)")
    I("s_barrier")
    I("s_branch L_control")
    A("L_cont:")
    I(f"s_mov_b32 s58, {OML}")
    I(f"v_lshl_add_u32 v{RA[1]}, v22, 4, s58"); I(f"v_lshl_add_u32 v{RA[0]}, v17, 8, v{RA[1]}")
    I("s_lshl_b32 s59, s70, 5"); I(f"s_add_u32 s59, s59, {PL}")
    I(f"v_lshl_add_u32 v{PA}, v21, 2, s59")
    I("v_cmp_gt_u32 vcc, 8, v21")
    I("v_mov_b32 v16, 0x0100"); I("v_mov_b32 v17, 0x0302")
    I("v_cndmask_b32 v16, v16, v17, vcc")
    I("v_cmp_eq_u32 vcc, 0, v18")
    I("v_or_b32 v17, 0x0c0c0000, v16")
    I("v_lshlrev_b32 v16, 16, v16"); I("v_or_b32 v16, 0x0c0c, v16")
    I("v_cndmask_b32 v16, v16, v17, vcc")
    I("v_bfe_u32 v18, v21, 1, 2")
    I("v_mov_b32 v17, 0x0c0c0c0c")
    for q in range(4):
        I(f"v_cmp_eq_u32 vcc, {q}, v18"); I(f"v_mov_b32 v{PQ+q}, 0"); I("s_nop 0"); I(f"v_cndmask_b32 v{SEL[q]}, v17, v16, vcc")
    I(f"v_mov_b32 v{CNEG}, {f2u(cneg):#x}")
    I(f"v_mov_b32 v{ONE}, 1.0")
    I(f"v_mov_b32 v{DEN}, 0")
    for r in range(4): I(f"v_mov_b32 v{ACC+r}, 0")
    I(f"s_mov_b32 s52, {f2u(c1):#x}"); I(f"s_mov_b32 s53, {f2u(ism):#x}"); I(f"s_mov_b32 s54, {f2u(1e-6):#x}")
    I("s_mov_b32 s74, 0x07060302")
    I(f"v_mov_b32 v{PAT}, {l0}"); I(f"v_mov_b32 v{PRG}, 1")
    I("s_lshr_b32 s75, s70, 4"); I(f"v_mov_b32 v{CA}, {CL}"); I(f"v_add_u32 v{PGA}, s75, v{CA}")
    if tl:
        I(f"v_and_b32 v{TLL}, 63, v0"); I(f"v_mov_b32 v{TLV}, 0"); I("s_mov_b32 s78, 0")
    if pst == 1: I("s_memrealtime s[90:91]")
    I(f"s_waitcnt vmcnt({ib if qfirst else ib-qa})")
    if pst: I("s_memrealtime s[92:93]")
    I("s_barrier")
    if pst: I("s_memrealtime s[94:95]"); I("s_waitcnt lgkmcnt(0)")
    for c in range(4): I(f"ds_read_b128 v[{OM+4*c}:{OM+4*c+3}], v{RA[0]} offset:{64*c}")
    for c in range(4): I(f"ds_read_b128 v[{KR+4*c}:{KR+4*c+3}], v{RA[1]} offset:{2048+64*c}")
    def proj():
        I(f"v_mov_b32 v{N0}, 0"); I(f"v_mov_b32 v{N1}, 0")
        for c in range(4):
            I(f"s_waitcnt lgkmcnt({3-c})")
            srcc = "0" if c == 0 else f"v[{X}:{X+3}]"
            I(f"v_mfma_f32_16x16x32_bf16 v[{X}:{X+3}], v[{OM+4*c}:{OM+4*c+3}], v[{KR+4*c}:{KR+4*c+3}], {srcc}")
            for j in range(4): I(f"v_dot2c_f32_bf16 v{N0+(j&1)}, v{KR+4*c+j}, v{KR+4*c+j}")
        I("s_nop 2")
        I(f"v_add_f32 v{N0}, v{N0}, v{N1}")
        I("s_nop 1")
        I(f"v_mfma_f32_16x16x4_f32 v[{X}:{X+3}], v{CNEG}, v{N0}, v[{X}:{X+3}]")
    proj()
    I("s_add_u32 s36, s12, s55"); I("s_addc_u32 s37, s13, 0"); I("s_movk_i32 s38, 256"); I("s_mov_b32 s39, s23")
    I("s_lshl_b32 s56, s50, 10")
    I("s_add_u32 s44, s16, s56"); I("s_addc_u32 s45, s17, 0"); I("s_movk_i32 s46, 1024"); I("s_mov_b32 s47, s23")
    I(f"v_mov_b32 v{T0}, s54")
    I(f"v_mul_f32 v{A0}, s52, v{X}"); I(f"v_mul_f32 v{A1}, s52, v{X+1}")
    I(f"v_exp_f32 v{A0}, v{A0}"); I(f"v_exp_f32 v{A1}, v{A1}")
    I("s_nop 0")
    I(f"v_fma_f32 v{A0}, v{A0}, s53, v{T0}"); I(f"v_fma_f32 v{A1}, v{A1}, s53, v{T0}")
    I(f"v_add_f32 v{BB}, v{A0}, v{A1}"); I(f"v_mul_f32 v{BB}, s54, v{BB}")
    I(f"v_mul_f32 v{A0}, s53, v{A0}"); I(f"v_mul_f32 v{A1}, s53, v{A1}")
    for c in range(ib-4, 4):
        I("s_waitcnt vmcnt(4)"); ld(c)
    nlab = [0]
    def wait(j):
        if j in so:
            nlab[0] += 1
            I(f"s_cmp_ge_u32 s80, {4*(so.index(j)+1)+neg}")
            I(f"s_cbranch_scc1 L_p{nlab[0]}")
            I("s_waitcnt vmcnt(4)")
            if neg and so.index(j) == 0:
                I(f"s_cmp_ge_u32 s80, {neg}")
                I(f"s_cbranch_scc1 L_p{nlab[0]}")
                I("s_waitcnt vmcnt(3)")
            A(f"L_p{nlab[0]}:")
        else: I("s_waitcnt vmcnt(4)")
    def top():
        if tl: I("s_memrealtime s[76:77]")
        if 0 <= enc < 64:
            nlab[0] += 1
            I("s_add_u32 s87, s87, 1"); I(f"s_cmp_lg_u32 s87, {enc+1}"); I(f"s_cbranch_scc1 L_e{nlab[0]}")
            I("s_memrealtime s[98:99]"); I("s_waitcnt lgkmcnt(0)"); A(f"L_e{nlab[0]}:")
        I(f"v_add3_u32 v{PQ}, v{PQ}, v{PQ+1}, v{PQ+2}")
        I(f"v_mad_i32_i24 v{PQ+3}, v{PRG}, -4, v{PQ+3}")
        I(f"v_add3_u32 v{PQ}, v{PQ}, v{PQ+3}, {io}")
        I(f"v_mad_i32_i24 v{PAT}, v{PQ}, {iw}, v{PAT}")
        I(f"v_max_i32 v{PAT}, 0, v{PAT}")
        I(f"v_add_u32 v{PRG}, 1, v{PRG}")
        I(f"v_readfirstlane_b32 s80, v{PAT}")
        I(f"ds_write_b32 v{PGA}, v{PRG} offset:16")
        I(f"ds_read_b32 v{PAT}, v{CA}")
        I(f"ds_read_b128 v[{PQ}:{PQ+3}], v{CA} offset:16")
        I(f"s_or_b32 s48, s48, {(~tmask) & 0xffffffff:#x}"); I("s_add_u32 s48, s48, 1"); I(f"s_and_b32 s48, s48, {tmask:#x}")
        I("s_addk_i32 s73, 0x1000"); I("s_and_b32 s73, s73, 0x3000"); I("s_or_b32 m0, s71, s73"); I("s_xor_b32 s72, m0, 0x2000")
        I("s_lshr_b32 s81, s73, 12"); I("s_add_u32 s80, s80, s81")
        if tl:
            I("s_waitcnt lgkmcnt(0)"); I("s_sub_u32 s76, s76, s60"); I(f"v_mov_b32 v{T1}, s76"); I(f"v_cmp_eq_u32 vcc, s78, v{TLL}"); I("s_add_u32 s78, s78, 1"); I("s_nop 0")
            I(f"v_cndmask_b32 v{TLV}, v{TLV}, v{T1}, vcc")
    def k_read():
        for c in range(4): I(f"ds_read_b128 v[{KR+4*c}:{KR+4*c+3}], v{RA[c]}")
    def k_exp():
        I("s_nop 6")
        I(f"v_mul_f32 v{T0}, s52, v{X}"); I(f"v_mul_f32 v{T1}, s52, v{X+1}")
        I(f"v_exp_f32 v{T0}, v{T0}"); I(f"v_exp_f32 v{T1}, v{T1}")
        I("s_nop 0")
        I(f"v_fma_f32 v{T0}, v{A0}, v{T0}, v{BB}"); I(f"v_fma_f32 v{T0}, v{A1}, v{T1}, v{T0}")
        I(f"v_add_f32 v{DEN}, v{DEN}, v{T0}")
        I("s_nop 0")
        I(f"v_mfma_f32_16x16x4_f32 v[{W}:{W+3}], v{ONE}, v{T0}, 0")
    def k_pack():
        I("s_nop 6")
        I(f"v_and_b32 v{T0}, 0xffff0000, v{W}"); I(f"v_sub_f32 v{T0}, v{W}, v{T0}")
        I(f"v_perm_b32 v{T0}, v{W}, v{T0}, s74")
        I("s_mov_b64 exec, 0xffff")
        I(f"ds_write_b32 v{PA}, v{T0}")
        I("s_mov_b64 exec, -1")
        I(f"v_add_u32 v{PA}, 64, v{PA}")
    assert sorted(so) == [1,2,3]
    if enc >= 0: I("s_mov_b32 s87, 0")
    A("L_kloop:")
    top()
    I("s_cmp_lg_u32 s48, s22")
    I("s_cbranch_scc1 L_kgo")
    I("s_mov_b32 s48, 0"); I("s_mov_b64 s[20:21], s[24:25]")
    for c in range(4): I(f"v_mov_b32 v{VO[c]}, v{VOL}")
    A("L_kgo:")
    I(f"v_add_u32 v{RA[0]}, s72, v{RB}")
    for c in range(1,4): I(f"v_xor_b32 v{RA[c]}, {64*c}, v{RA[0]}")
    for j, f in enumerate((k_read, proj, k_exp, k_pack)):
        wait(j); ld(j); f()
    I(f"s_cmpk_lg_u32 s48, {t1:#x}")
    I("s_cbranch_scc1 L_kloop")
    def p_read():
        I(f"ds_read_b128 v[{W}:{W+3}], v{PA}")
        I(f"v_add_u32 v{PA}, 64, v{PA}")
    def perms(rs, w=True):
        if w: I("s_waitcnt lgkmcnt(0)")
        for r in rs:
            for q in range(4): I(f"v_perm_b32 v{OM+4*r+q}, v{W+r}, v{W+r}, v{SEL[q]}")
    A("L_switch:")
    I(f"v_and_b32 v{T0}, 48, v0")
    I(f"v_add_u32 v{PA}, s59, v{T0}")
    p_read()
    I(f"v_add_f32 v{DEN}, v{DEN}, v{DEN} row_ror:8")
    I(f"v_and_b32 v{T0}, 15, v0"); I(f"v_lshl_add_u32 v{RA[1]}, v{T0}, 5, s59")
    I(f"v_add_f32 v{DEN}, v{DEN}, v{DEN} row_ror:4")
    I(f"v_and_b32 v{T0}, 16, v0"); I(f"v_add_u32 v{RA[1]}, v{T0}, v{RA[1]}")
    I(f"v_add_f32 v{DEN}, v{DEN}, v{DEN} row_ror:2")
    I(f"v_and_b32 v{T0}, 32, v0"); I(f"v_lshl_add_u32 v{RA[1]}, v{T0}, 4, v{RA[1]}")
    I(f"v_add_f32 v{DEN}, v{DEN}, v{DEN} row_ror:1")
    I(f"v_lshlrev_b32 v{A0}, 3, v0"); I(f"v_lshlrev_b32 v{A1}, 1, v0")
    I(f"v_mfma_f32_16x16x4_f32 v[{X}:{X+3}], v{ONE}, v{DEN}, 0")
    I(f"v_lshlrev_b32 v{RA[2]}, 2, v0"); I(f"v_add_u32 v{RA[2]}, {PL}, v{RA[2]}")
    I(f"v_subrev_u32 v{T0}, 32, v{PGA}"); I(f"v_subrev_u32 v{RA[3]}, 32, v{CA}")
    perms(range(4))
    I(f"ds_write_b32 v{T0}, v{X}")
    def v_mm():
        for r in range(4): I(f"ds_read_b128 v[{KR+4*r}:{KR+4*r+3}], v{RA[0]} offset:{1024*r}")
        for r in range(4):
            I(f"s_waitcnt lgkmcnt({3-r})")
            I(f"v_mfma_f32_16x16x32_bf16 v[{ACC}:{ACC+3}], v[{OM+4*r}:{OM+4*r+3}], v[{KR+4*r}:{KR+4*r+3}], v[{ACC}:{ACC+3}]")
        if not peel:
            I(f"s_cmp_eq_u32 s48, {0x100000+t1:#x}")
            I("s_cbranch_scc1 L_done")
    A("L_vloop:")
    top()
    I(f"v_add_u32 v{RA[0]}, s72, v{L16}")
    for j, f in enumerate((v_mm, p_read, lambda: perms([0,1]), lambda: perms([2,3], False))):
        wait(j); ld(j); f()
    if not peel:
        I("s_branch L_vloop")
    else:
        I("s_cmp_lg_u32 s48, s22")
        I("s_cbranch_scc1 L_vloop")
        I(f"v_xor_b32 v{RA[0]}, 0x1000, v{RA[0]}")
        I("s_waitcnt vmcnt(5)")
        for r in range(3): I(f"ds_read_b128 v[{KR+4*r}:{KR+4*r+3}], v{RA[0]} offset:{1024*r}")
        for r in range(3):
            I(f"s_waitcnt lgkmcnt({2-r})")
            I(f"v_mfma_f32_16x16x32_bf16 v[{ACC}:{ACC+3}], v[{OM+4*r}:{OM+4*r+3}], v[{KR+4*r}:{KR+4*r+3}], v[{ACC}:{ACC+3}]")
        I("s_waitcnt vmcnt(4)")
        I(f"ds_read_b128 v[{KR+12}:{KR+15}], v{RA[0]} offset:3072")
        I("s_waitcnt lgkmcnt(0)")
        I(f"v_mfma_f32_16x16x32_bf16 v[{ACC}:{ACC+3}], v[{OM+12}:{OM+15}], v[{KR+12}:{KR+15}], v[{ACC}:{ACC+3}]")
        I("s_nop 1")
    A("L_done:")
    if stamps: I("s_memrealtime s[62:63]")
    if enc == 64: I("s_memrealtime s[98:99]")
    if wv:
        I("s_waitcnt lgkmcnt(0)"); I(f"v_mov_b32 v{T1}, s62"); I(f"ds_write_b32 v{PGA}, v{T1} offset:32")
    if ts: I("s_memtime s[88:89]")
    I("s_nop 4")
    I("s_cmpk_ge_u32 s70, 128")
    I(f"ds_write_b128 v{RA[1]}, v[{ACC}:{ACC+3}]")
    I("s_waitcnt lgkmcnt(0)")
    I("s_barrier")
    I("s_cbranch_scc1 L_end")
    if ts: I("s_memtime s[90:91]")
    I(f"ds_read_b128 v[48:51], v{RA[3]}")
    for w in range(4): I(f"ds_read2st64_b32 v[{40+2*w}:{41+2*w}], v{RA[2]} offset0:{8*w} offset1:{8*w+2}")
    I("s_waitcnt lgkmcnt(2)" if not ts else "s_waitcnt lgkmcnt(0)")
    I("v_pk_add_f32 v[48:49], v[48:49], v[50:51]"); I("v_pk_add_f32 v[40:41], v[40:41], v[42:43]")
    I("v_add_f32 v53, v48, v49")
    I("s_waitcnt lgkmcnt(0)")
    I("v_pk_add_f32 v[44:45], v[44:45], v[46:47]")
    I("v_and_b32 v43, 0x7fffffff, v53")
    I("v_pk_add_f32 v[40:41], v[40:41], v[44:45]")
    I("v_add_f32 v42, v40, v41")
    if ts: I("s_memtime s[92:93]")
    I(f"buffer_atomic_swap_x2 v[42:43], v{A0}, s[44:47], 0 offen sc0")
    I("v_add_f32 v52, v40, v41")
    I("s_waitcnt vmcnt(0)")
    if ts: I("s_memtime s[94:95]")
    I("v_cmp_le_i32 vcc, 0, v43")
    I("v_pk_add_f32 v[42:43], v[42:43], v[52:53]")
    I("s_and_saveexec_b64 s[56:57], vcc")
    I("s_cbranch_execz L_fin")
    I("v_add_f32 v43, s54, v43"); I("v_rcp_f32 v44, v43"); I("s_nop 0")
    if nr: I("v_fma_f32 v45, -v43, v44, 1.0"); I("v_fma_f32 v44, v45, v44, v44")
    I("v_mul_f32 v42, v42, v44")
    I("v_cvt_pk_bf16_f32 v42, v42, v42")
    I(f"buffer_store_short v42, v{A1}, s[36:39], 0 offen")
    A("L_fin:")
    if fixed or stamps:
        I("s_mov_b64 exec, -1")
        I("s_cmp_lg_u32 s70, 0"); I("s_cbranch_scc1 L_end")
        if ack: I("s_waitcnt vmcnt(0)")
    if enc >= 0:
        if enc == 65: I("s_memrealtime s[98:99]")
        if enc >= 70: I(f"s_mov_b32 s98, s{88+2*(enc-70)}")
        I("s_waitcnt lgkmcnt(0)")
        I("s_sub_u32 s98, s98, s60")
        for lab, t in (("L_s1", 5500), ("L_s2", 7000)):
            A(lab+":")
            I("s_memrealtime s[68:69]"); I("s_waitcnt lgkmcnt(0)"); I("s_sub_u32 s68, s68, s60")
            I(f"s_cmp_lt_u32 s68, {t}"); I(f"s_cbranch_scc1 {lab}")
            if lab == "L_s1":
                if dg:
                    I("s_mov_b32 s40, s14"); I("s_mov_b32 s41, s15"); I("s_movk_i32 s42, 256"); I("s_mov_b32 s43, 0x20000")
                    mk = sum(1 << x for x in (0,1,2,3,4,5,6,8,10,14,30,46,62))
                    I(f"s_mov_b32 exec_lo, {mk & 0xffffffff:#x}"); I(f"s_mov_b32 exec_hi, {mk >> 32:#x}")
                    I(f"v_mbcnt_lo_u32_b32 v{TLL}, exec_lo, 0"); I(f"v_mbcnt_hi_u32_b32 v{TLL}, exec_hi, v{TLL}"); I(f"v_lshlrev_b32 v{TLL}, 2, v{TLL}")
                    I(f"buffer_atomic_add v{TLV}, v{TLL}, s[40:43], 0 offen offset:4")
                    I("s_mov_b64 exec, -1")
                if em == 'G':
                    I("s_and_b32 s99, s60, 0xfffff"); I("s_add_u32 s98, s98, s99"); I("s_atomic_add s99, s[14:15], 60")
                I(("s_atomic_add" if em == 's' else "s_atomic_umax") + " s98, s[14:15], 56"); I("s_waitcnt lgkmcnt(0)")
        I("s_mov_b32 s98, 0"); I("s_atomic_or s98, s[14:15], 56 glc"); I("s_waitcnt lgkmcnt(0)")
        if em == 'G':
            I("s_mov_b32 s99, 0"); I("s_atomic_or s99, s[14:15], 60 glc"); I("s_waitcnt lgkmcnt(0)"); I("s_lshr_b32 s99, s99, 8"); I("s_sub_u32 s98, s98, s99")
        I("s_mul_i32 s98, s98, 10")
        if em == 's': I("s_lshr_b32 s98, s98, 8")
        I(f"s_sub_i32 s98, s98, {eo*1000}"); I("s_max_i32 s98, s98, 0"); I("s_min_i32 s98, s98, 15000")
        I("s_add_u32 s60, s60, s98")
    if fixed:
        A("L_spin:")
        I("s_memrealtime s[68:69]"); I("s_waitcnt lgkmcnt(0)"); I("s_sub_u32 s68, s68, s60")
        I(f"s_cmp_lt_i32 s68, {fixed*100}"); I("s_cbranch_scc1 L_spin")
    if stamps:
        if ts:
            I("s_waitcnt vmcnt(0)"); I("s_memtime s[96:97]")
        I("s_memrealtime s[64:65]")
        I("s_getreg_b32 s66, hwreg(HW_REG_XCC_ID)"); I("s_getreg_b32 s67, hwreg(HW_REG_HW_ID)")
        I("s_waitcnt lgkmcnt(0)")
        I("s_mov_b32 s61, 0"); I("s_sub_u32 s63, s64, s62")
        if wv:
            I(f"ds_read_b128 v[40:43], v{CA} offset:32"); I("s_waitcnt lgkmcnt(0)")
            for r in range(4): I(f"v_readfirstlane_b32 s{88+2*r}, v{40+r}")
            I("s_nop 1")
            for r in (88,90,92,94): I(f"s_sub_u32 s{r}, s64, s{r}")
            I("s_pack_ll_b32_b16 s61, s88, s90"); I("s_pack_ll_b32_b16 s65, s92, s94")
        if pst:
            for r in (88,90,92,94): I(f"s_sub_u32 s{r}, s{r}, s60")
            I("s_pack_ll_b32_b16 s61, s88, s90"); I("s_pack_ll_b32_b16 s65, s92, s94")
        if ts:
            I("s_sub_u32 s96, s96, s94"); I("s_sub_u32 s94, s94, s92"); I("s_sub_u32 s92, s92, s90"); I("s_sub_u32 s90, s90, s88")
            I("s_pack_ll_b32_b16 s61, s90, s92"); I("s_pack_ll_b32_b16 s65, s94, s96")
        for j in range(8): I(f"v_mov_b32 v{20+j}, s{60+j}")
        I("s_add_u32 s44, s16, 0x100000"); I("s_addc_u32 s45, s17, 0"); I("s_mov_b32 s46, 0x100000")
        if tl:
            I("s_lshl_b32 s55, s2, 8"); I("s_add_u32 s55, s55, 0x80000"); I(f"v_lshlrev_b32 v{TLL}, 2, v{TLL}")
            I(f"buffer_store_dword v{TLV}, v{TLL}, s[44:47], s55 offen")
        I("s_lshl_b32 s55, s2, 5"); I("v_mov_b32 v14, 0"); I("s_mov_b64 exec, 1")
        I("buffer_store_dwordx4 v[20:23], v14, s[44:47], s55 offen")
        I("buffer_store_dwordx4 v[24:27], v14, s[44:47], s55 offen offset:16")
    A("L_end:")
    I("s_endpgm")
    if hop2:
        A("L_hopA:")
        I("s_branch L_hopB")
    A("L_control:")
    I("s_and_b32 s57, s50, 15"); I("s_lshl_b32 s57, 1, s57")
    I("s_cmp_lg_u32 s19, 0")
    I("s_cbranch_scc1 L_h2")
    I("s_waitcnt vmcnt(0)")
    I("s_atomic_or s57, s[14:15], 0")
    A("L_h2:")
    I("s_bfe_u32 s52, s2, 0x30003"); I("s_lshl_b32 s52, s52, 8"); I(f"s_add_u32 s52, s52, {CB:#x}")
    for i in range(4): I(f"s_mov_b32 s{80+i}, {sum(lvn[8*i+j] << (4*j) for j in range(8)):#x}")
    cm = sum(1 << x for x in cpl)
    I(f"s_mov_b32 s84, {cm & 0xffffffff:#x}"); I(f"s_mov_b32 s85, {cm >> 32:#x}")
    A("L_hl:")
    I("s_ff1_i32_b64 s53, s[84:85]")
    I("s_cmp_lt_i32 s53, 0")
    I("s_cbranch_scc1 L_hf")
    I("s_bitset0_b64 s[84:85], s53")
    I("s_lshl_b32 s53, s53, 2")
    A("L_hp:")
    I(f"s_sleep {slp}"); I("ds_read_b128 v[4:7], v1 offset:16"); I("s_waitcnt lgkmcnt(0)")
    I("v_add_u32 v4, v4, v5"); I("v_add3_u32 v4, v4, v6, v7"); I("s_nop 0"); I("v_readfirstlane_b32 s55, v4"); I("s_nop 1")
    I("s_cmp_lt_u32 s55, s53"); I("s_cbranch_scc1 L_hp")
    I("s_mov_b32 s55, 1"); I("s_atomic_add s55, s[16:17], s52 glc")
    I("s_waitcnt lgkmcnt(0)")
    I("s_addk_i32 s52, 2048")
    I("s_add_u32 s55, s55, 1")
    I("s_bitcmp1_b32 s55, 4"); I("s_cselect_b64 s[58:59], s[82:83], s[80:81]")
    I("s_lshl_b32 s55, s55, 2"); I("s_lshr_b64 s[58:59], s[58:59], s55"); I("s_and_b32 s58, s58, 15")
    I("v_mov_b32 v2, s58"); I("ds_write_b32 v1, v2")
    I("s_branch L_hl")
    A("L_hf:")
    I("s_load_dword s20, s[14:15], 0")
    A("L_hf1:")
    I("s_waitcnt lgkmcnt(0)")
    I("s_and_b32 s20, s20, s57")
    I("s_cbranch_scc1 L_hx")
    I("s_sleep 16")
    I("s_atomic_or s20, s[14:15], 0 glc")
    I("s_branch L_hf1")
    A("L_hx:")
    I("s_endpgm")
    A('.section .rodata,"a"'); A(".p2align 6"); A(f".amdhsa_kernel {NAME}")
    A(f"  .amdhsa_next_free_vgpr {nv}"); A(f"  .amdhsa_next_free_sgpr {100 if (stamps or fixed) else 88}"); A(f"  .amdhsa_accum_offset {(nv+3)//4*4}")
    A("  .amdhsa_group_segment_fixed_size 0"); A("  .amdhsa_kernarg_size 56"); A("  .amdhsa_user_sgpr_count 2")
    A("  .amdhsa_user_sgpr_kernarg_segment_ptr 1"); A("  .amdhsa_system_sgpr_workgroup_id_x 1")
    A("  .amdhsa_float_denorm_mode_32 3")
    A(".end_amdhsa_kernel")
    return "\n".join(L)+"\n"

if __name__ == "__main__":
    d = sys.argv[1]
    os.makedirs(d, exist_ok=True)
    for spec in sys.argv[2:]:
        kv = {}
        for t in spec.split(","):
            if not t or t == "base": continue
            k, v = t.split("=")
            kv[k] = v if k in ('lv','cps','so','tm','em') else (int(v, 0) if v[0].isdigit() else v.replace("+", " "))
        name = "v10xxxxxxxxxxxx_" + spec.replace("=", "").replace(",", "_")
        open(f"{d}/{name}.s", "w").write(gen(**kv))
```

```python
import sys, struct, math
def f2u(x): return struct.unpack('<I', struct.pack('<f', x))[0]
NAME = "standalone__linear_kernel_rfa__decode_kernel"
HEADER = """; Kernarg layout for this problem (56 bytes, ptrs only, base s[0:1]):
"""
DOC = """;
;
;  * The two halves of a head meet in d_ws with one returning 8-byte swap per output element {num, den}; the lane that gets
;
"""
def isize(t):
    import re
    t = t.split(';')[0].strip()
    op = t.split()[0]
    if op.startswith(('buffer_','ds_','v_mfma','v_perm','v_fma','v_pk_','v_lshl_add','v_bfe','v_add3','v_mad','v_cvt_pk','s_load','s_atomic')): return 8
    if op.startswith(('s_nop','s_waitcnt','s_sleep','s_movk','s_addk','s_cmpk','s_cbranch','s_branch','s_setprio')): return 4
    for x in re.findall(r'(?<![\w\[:.])(0x[0-9a-fA-F]+|\d+)(?![\w\]:(.])', t.split(None,1)[1]):
        if int(x, 0) > 64: return 8
    return 4

def gen(lv='0001123456789bdf', l0=3, cps=(9,18,27,36,44,51,56,60), neg=2, iw=2, io=2, slp=3, test=0):
    L = []; A = L.append; off = [0]
    def I(s, c=None):
        off[0] += isize(s) if ' ' in s else 4
        A("    " + (s if c is None else f"{s:<64}; {c}"))
    def C(s): A("    ; " + s)
    lvn = [int(ch, 16) for ch in lv for _ in range(32//len(lv))]
    tmask = 0x1f4000
    CB = 0x20000
    PL = 65536; OML = PL+8192; QL = OML+2048; DL = QL+2048; CL = DL+32
    lds = DL+64
    scale = 128**-0.25
    c1 = scale*math.log2(math.e); cneg = -0.5*scale; ism = 8**-0.5
    A(HEADER.rstrip())
    A(f"; @launch grid=(256,1,1) block=(320,1,1) lds={lds}")
    A(DOC.rstrip())
    A('.amdgcn_target "amdgcn-amd-amdhsa--gfx950"')
    A(".text"); A(f".globl {NAME}"); A(".p2align 8"); A(f".type {NAME},@function"); A(f"{NAME}:")
    VO = [1,2,3,4]; VOL = 5; RA = [6,7,8,9]; SEL = [10,11,12,13]; CNEG, ONE = 14, 15
    ACC, X, W = 16, 20, 24
    RB, PA, A0, A1, BB, DEN, N0, N1, T0, T1, LVL, L16 = 28, 29, 30, 31, 32, 33, 34, 35, 36, 37, 38, 39
    OM = 40; KR = 56; CA, PRG, PGA = 72, 73, 74; PQ = 76
    I("s_load_dwordx8 s[4:11], s[0:1], 0", "q, k, v, omega")
    I("s_load_dwordx4 s[12:15], s[0:1], 32", "out, debug")
    I("s_load_dwordx2 s[16:17], s[0:1], 48", "ws")
    I("v_readfirstlane_b32 s70, v0", "64 * wave")
    I("s_cmpk_ge_u32 s2, 256")
    I("s_cbranch_scc1 L_end", "workgroups past the data leave")
    I(f"v_and_b32 v{L16}, 63, v0")
    I("s_and_b32 s50, s2, 7"); I("s_lshr_b32 s18, s2, 4"); I("s_lshl3_add_u32 s50, s18, s50", "head; bit 3 of the id picks the half")
    I(f"v_lshlrev_b32 v{L16}, 4, v{L16}", "lane * 16")
    I("s_mov_b32 s23, 0x20000")
    I("s_sub_u32 s70, s70, 64", "wave 0 is the helper")
    I("s_cbranch_scc0 L_stream")
    C("---- helper of 16 workgroups: mark the hand-off slots empty and reset the rank counters (all ones) ----")
    I("s_and_b32 s19, s2, 0xe8")
    I("s_cbranch_scc1 L_helper")
    I("s_lshl_b32 s18, s50, 10")
    I(f"s_mov_b32 s22, {CB+0x4000:#x}")
    for r in range(4): I(f"v_mov_b32 v{W+r}, -1")
    I("s_waitcnt lgkmcnt(0)")
    I("s_mov_b64 s[20:21], s[16:17]")
    if test == 1:
        for _ in range(20): I("s_sleep 127")
    A("L_init:")
    I(f"buffer_store_dwordx4 v[{W}:{W+3}], v{L16}, s[20:23], s18 offen sc0 sc1")
    I("s_addk_i32 s18, 0x4000")
    I("s_cmp_lt_u32 s18, s22")
    I("s_cbranch_scc1 L_init")
    I("s_branch L_helper")
    C("---- streaming waves ----")
    A("L_stream:")
    I("s_setprio 3")
    I("s_and_b32 s3, s2, 8"); I("s_lshl_b32 s3, s3, 12", "half * 32 KiB")
    I("s_lshl_b32 s18, s70, 6"); I("s_or_b32 s3, s3, s18", "+ wave * 4 KiB")
    I(f"v_add_u32 v{VOL}, s3, v{L16}", "linear source offset (V)")
    I("v_and_b32 v23, 48, v0"); I("v_lshlrev_b32 v23, 2, v23")
    I(f"v_xor_b32 v{VO[0]}, v{VOL}, v23", "K source offsets: 16-B chunks swizzled inside each row")
    for c in range(1,4): I(f"v_xor_b32 v{VO[c]}, {16*c}, v{VO[0]}")
    I("s_lshl_b32 s71, s70, 8", "ring base of this wave")
    I("s_lshl_b32 s19, s70, 4")
    I(f"s_add_u32 m0, s19, {OML}")
    I("s_mov_b32 s31, s23"); I("s_movk_i32 s30, 256")
    I("s_lshl_b32 s18, s50, 20"); I("s_lshl_b32 s55, s50, 8")
    I("s_mov_b32 s22, 0x100000", "one head of K / V")
    I("s_movk_i32 s48, 0x4000", "tile 1"); I("s_movk_i32 s73, 0x1000", "ring slot 1")
    I("s_cmpk_lt_u32 s70, 128")
    I("s_cselect_b32 s19, s19, s55"); I("s_cselect_b32 s30, 1024, s30")
    I("s_waitcnt lgkmcnt(0)")
    def ld(c, so="s48"): I(f"buffer_load_dwordx4 v{VO[c]}, s[20:23], {so} offen offset:{1024*c} nt lds")
    I("s_cselect_b64 s[28:29], s[10:11], s[4:5]")
    I("s_add_u32 s28, s28, s19"); I("s_addc_u32 s29, s29, 0")
    I(f"buffer_load_dwordx4 v{L16}, s[28:31], 0 offen lds", "omega halves (waves 0,1), q (waves 2,3)")
    I("s_mov_b32 m0, s71")
    I("s_add_u32 s20, s6, s18"); I("s_addc_u32 s21, s7, 0")
    for c in range(4): ld(c, "0")
    I("s_or_b32 m0, s71, s73")
    I("s_add_u32 s24, s8, s18")
    for c in range(4): ld(c)
    I("s_addc_u32 s25, s9, 0", "V base kept in s[24:25]")
    S = []
    def P(s, c=None): S.append((s, c))
    P("v_subrev_u32 v0, 64, v0")
    P("v_and_b32 v21, 15, v0", "n = lane & 15"); P("v_bfe_u32 v22, v0, 4, 2", "g = lane >> 4")
    P("v_and_b32 v16, 3, v21"); P("v_lshlrev_b32 v16, 10, v16")
    P("v_lshrrev_b32 v17, 2, v21"); P("v_lshl_add_u32 v16, v17, 8, v16", "column n holds tile row 4*(n&3) + (n>>2)")
    P("v_xor_b32 v18, v22, v21"); P(f"v_lshl_add_u32 v{RB}, v18, 4, v16", "K fragment address inside a ring slot")
    P("v_lshlrev_b32 v17, 1, v17"); P("v_and_b32 v18, 1, v21"); P("v_add_u32 v17, v17, v18", "A row i holds feature 2*(i>>2) + (i&1)")
    P(f"s_mov_b32 s58, {OML}")
    P(f"v_lshl_add_u32 v{RA[1]}, v22, 4, s58"); P(f"v_lshl_add_u32 v{RA[0]}, v17, 8, v{RA[1]}")
    P("s_lshl_b32 s59, s70, 5"); P(f"s_add_u32 s59, s59, {PL}")
    P(f"v_lshl_add_u32 v{PA}, v21, 2, s59", "weight write address")
    P("v_cmp_gt_u32 vcc, 8, v21")
    P("v_mov_b32 v16, 0x0100"); P("v_mov_b32 v17, 0x0302")
    P("v_cndmask_b32 v16, v16, v17, vcc", "rows 0-7 take the hi half of a weight, rows 8-15 the lo half")
    P("v_cmp_eq_u32 vcc, 0, v18")
    P("v_or_b32 v17, 0x0c0c0000, v16")
    P("v_lshlrev_b32 v16, 16, v16"); P("v_or_b32 v16, 0x0c0c, v16")
    P("v_cndmask_b32 v16, v16, v17, vcc")
    P("v_bfe_u32 v18, v21, 1, 2")
    P("v_mov_b32 v17, 0x0c0c0c0c")
    fill = [f"v_mov_b32 v{ONE}, 1.0", f"v_mov_b32 v{DEN}, 0", f"v_mov_b32 v{LVL}, {l0}", f"v_mov_b32 v{PRG}, 1"]
    for q in range(4):
        P(f"v_cmp_eq_u32 vcc, {q}, v18"); P(f"v_mov_b32 v{PQ+q}, 0"); P(fill[q]); P(f"v_cndmask_b32 v{SEL[q]}, v17, v16, vcc", "v_perm selector" if q == 0 else None)
    P(f"v_mov_b32 v{CNEG}, {f2u(cneg):#x}", "-0.5 * d^-0.25")
    for r in range(4): P(f"v_mov_b32 v{ACC+r}, 0")
    P(f"s_mov_b32 s52, {f2u(c1):#x}", "d^-0.25 * log2(e)"); P(f"s_mov_b32 s53, {f2u(ism):#x}", "m^-0.5"); P(f"s_mov_b32 s54, {f2u(1e-6):#x}", "1e-6")
    P("s_mov_b32 s74, 0x07060302")
    P("s_lshr_b32 s75, s70, 4"); P(f"v_mov_b32 v{CA}, {CL}"); P(f"v_add_u32 v{PGA}, s75, v{CA}")
    placed = False
    for s_, c_ in S:
        if not placed and off[0] + 4 >= 512:
            placed = True
            I("s_branch L_cont")
            C("(placed at byte 512 of the kernel: the helper's jump here starts the fetch of the code that follows)")
            A("L_helper:")
            I(f"v_mov_b32 v1, {CL}"); I(f"v_mov_b32 v2, {l0}")
            for r in range(4): I(f"v_mov_b32 v{4+r}, 1")
            I("ds_write_b32 v1, v2"); I("ds_write_b128 v1, v[4:7] offset:16")
            I("s_waitcnt lgkmcnt(0)")
            I("s_barrier")
            I("s_branch L_control")
            A("L_cont:")
        I(s_, c_)
    assert placed
    if test == 2:
        I("s_mul_i32 s60, s2, 0x9E3779B1"); I("s_lshr_b32 s60, s60, 28")
        A("L_t2:"); I("s_sleep 40"); I("s_sub_u32 s60, s60, 1"); I("s_cbranch_scc0 L_t2")
    I("s_waitcnt vmcnt(8)")
    I("s_barrier")
    C("---- phi_q: the K-tile arithmetic on q in every column ----")
    for c in range(4): I(f"ds_read_b128 v[{OM+4*c}:{OM+4*c+3}], v{RA[0]} offset:{64*c}")
    for c in range(4): I(f"ds_read_b128 v[{KR+4*c}:{KR+4*c+3}], v{RA[1]} offset:{2048+64*c}")
    def proj():
        I(f"v_mov_b32 v{N0}, 0"); I(f"v_mov_b32 v{N1}, 0")
        for c in range(4):
            I(f"s_waitcnt lgkmcnt({3-c})")
            srcc = "0" if c == 0 else f"v[{X}:{X+3}]"
            I(f"v_mfma_f32_16x16x32_bf16 v[{X}:{X+3}], v[{OM+4*c}:{OM+4*c+3}], v[{KR+4*c}:{KR+4*c+3}], {srcc}")
            for j in range(4): I(f"v_dot2c_f32_bf16 v{N0+(j&1)}, v{KR+4*c+j}, v{KR+4*c+j}")
        I("s_nop 2")
        I(f"v_add_f32 v{N0}, v{N0}, v{N1}")
        I("s_nop 1")
        I(f"v_mfma_f32_16x16x4_f32 v[{X}:{X+3}], v{CNEG}, v{N0}, v[{X}:{X+3}]", "omega.x - 0.5 * d^-0.25 * |x|^2")
    proj()
    I("s_add_u32 s36, s12, s55"); I("s_addc_u32 s37, s13, 0"); I("s_movk_i32 s38, 256"); I("s_mov_b32 s39, s23", "out row of this head")
    I("s_lshl_b32 s56, s50, 10")
    I("s_add_u32 s44, s16, s56"); I("s_addc_u32 s45, s17, 0"); I("s_movk_i32 s46, 1024"); I("s_mov_b32 s47, s23", "hand-off slot of this head")
    I(f"v_mov_b32 v{T0}, s54")
    I(f"v_mul_f32 v{A0}, s52, v{X}"); I(f"v_mul_f32 v{A1}, s52, v{X+1}")
    I(f"v_exp_f32 v{A0}, v{A0}"); I(f"v_exp_f32 v{A1}, v{A1}")
    I("s_nop 0")
    I(f"v_fma_f32 v{A0}, v{A0}, s53, v{T0}"); I(f"v_fma_f32 v{A1}, v{A1}, s53, v{T0}", "phi_q[2g], phi_q[2g+1]")
    I(f"v_add_f32 v{BB}, v{A0}, v{A1}"); I(f"v_mul_f32 v{BB}, s54, v{BB}", "1e-6 term of phi_k")
    I(f"v_mul_f32 v{A0}, s53, v{A0}"); I(f"v_mul_f32 v{A1}, s53, v{A1}")
    nlab = [0]; so = [3,1,2]
    def wait(j):
        if j == 0:
            I("s_waitcnt vmcnt(4)", "tile i-2 has landed"); return
        nlab[0] += 1
        I(f"s_cmp_ge_u32 s80, {4*(so.index(j)+1)+neg}")
        I(f"s_cbranch_scc1 L_w{nlab[0]}")
        I("s_waitcnt vmcnt(4)")
        if j == 3:
            I(f"s_cmp_ge_u32 s80, {neg}")
            I(f"s_cbranch_scc1 L_w{nlab[0]}")
            I("s_waitcnt vmcnt(3)")
        A(f"L_w{nlab[0]}:")
    def top():
        I(f"v_add3_u32 v{PQ}, v{PQ}, v{PQ+1}, v{PQ+2}")
        I(f"v_mad_i32_i24 v{PQ+3}, v{PRG}, -4, v{PQ+3}")
        I(f"v_add3_u32 v{PQ}, v{PQ}, v{PQ+3}, {io}", "how far the siblings are ahead")
        I(f"v_mad_i32_i24 v{LVL}, v{PQ}, {iw}, v{LVL}")
        I(f"v_max_i32 v{LVL}, 0, v{LVL}")
        I(f"v_add_u32 v{PRG}, 1, v{PRG}")
        I(f"v_readfirstlane_b32 s80, v{LVL}")
        I(f"ds_write_b32 v{PGA}, v{PRG} offset:16")
        I(f"ds_read_b32 v{LVL}, v{CA}")
        I(f"ds_read_b128 v[{PQ}:{PQ+3}], v{CA} offset:16")
        I(f"s_or_b32 s48, s48, {(~tmask) & 0xffffffff:#x}"); I("s_add_u32 s48, s48, 1"); I(f"s_and_b32 s48, s48, {tmask:#x}", "next tile")
        I("s_addk_i32 s73, 0x1000"); I("s_and_b32 s73, s73, 0x3000"); I("s_or_b32 m0, s71, s73", "slot to fill"); I("s_xor_b32 s72, m0, 0x2000", "slot to read")
        I("s_lshr_b32 s81, s73, 12"); I("s_add_u32 s80, s80, s81", "depth level, dithered over four tiles")
    def k_read():
        for c in range(4): I(f"ds_read_b128 v[{KR+4*c}:{KR+4*c+3}], v{RA[c]}")
    def k_exp():
        I("s_nop 6")
        I(f"v_mul_f32 v{T0}, s52, v{X}"); I(f"v_mul_f32 v{T1}, s52, v{X+1}")
        I(f"v_exp_f32 v{T0}, v{T0}"); I(f"v_exp_f32 v{T1}, v{T1}")
        I("s_nop 0")
        I(f"v_fma_f32 v{T0}, v{A0}, v{T0}, v{BB}"); I(f"v_fma_f32 v{T0}, v{A1}, v{T1}, v{T0}")
        I(f"v_add_f32 v{DEN}, v{DEN}, v{T0}")
        I("s_nop 0")
        I(f"v_mfma_f32_16x16x4_f32 v[{W}:{W+3}], v{ONE}, v{T0}, 0", "w of column n")
    def k_pack():
        I("s_nop 6")
        I(f"v_and_b32 v{T0}, 0xffff0000, v{W}"); I(f"v_sub_f32 v{T0}, v{W}, v{T0}")
        I(f"v_perm_b32 v{T0}, v{W}, v{T0}, s74", "{bf16 hi, bf16 lo}")
        I("s_mov_b64 exec, 0xffff")
        I(f"ds_write_b32 v{PA}, v{T0}")
        I("s_mov_b64 exec, -1")
        I(f"v_add_u32 v{PA}, 64, v{PA}")
    C("---- phase 1: iteration i requests tile i and works on K tile i-2 ----")
    A("L_kloop:")
    top()
    I("s_cmp_lg_u32 s48, s22")
    I("s_cbranch_scc1 L_kgo")
    I("s_mov_b32 s48, 0", "K is all requested: go on with V"); I("s_mov_b64 s[20:21], s[24:25]")
    for c in range(4): I(f"v_mov_b32 v{VO[c]}, v{VOL}")
    A("L_kgo:")
    I(f"v_add_u32 v{RA[0]}, s72, v{RB}")
    for c in range(1,4): I(f"v_xor_b32 v{RA[c]}, {64*c}, v{RA[0]}")
    for j, f in enumerate((k_read, proj, k_exp, k_pack)):
        wait(j); ld(j); f()
    I("s_cmpk_lg_u32 s48, 0x4000")
    I("s_cbranch_scc1 L_kloop")
    def p_read():
        I(f"ds_read_b128 v[{W}:{W+3}], v{PA}", "weights of the next V tile")
        I(f"v_add_u32 v{PA}, 64, v{PA}")
    def perms(rs, w=True):
        if w: I("s_waitcnt lgkmcnt(0)")
        for r in rs:
            for q in range(4): I(f"v_perm_b32 v{OM+4*r+q}, v{W+r}, v{W+r}, v{SEL[q]}")
    C("---- between the phases: denominator of this wave, A operands of V tile 0, closing addresses ----")
    I(f"v_and_b32 v{T0}, 48, v0")
    I(f"v_add_u32 v{PA}, s59, v{T0}")
    p_read()
    I(f"v_add_f32 v{DEN}, v{DEN}, v{DEN} row_ror:8")
    I(f"v_and_b32 v{T0}, 15, v0"); I(f"v_lshl_add_u32 v{RA[1]}, v{T0}, 5, s59")
    I(f"v_add_f32 v{DEN}, v{DEN}, v{DEN} row_ror:4")
    I(f"v_and_b32 v{T0}, 16, v0"); I(f"v_add_u32 v{RA[1]}, v{T0}, v{RA[1]}")
    I(f"v_add_f32 v{DEN}, v{DEN}, v{DEN} row_ror:2")
    I(f"v_and_b32 v{T0}, 32, v0"); I(f"v_lshl_add_u32 v{RA[1]}, v{T0}, 4, v{RA[1]}")
    I(f"v_add_f32 v{DEN}, v{DEN}, v{DEN} row_ror:1")
    I(f"v_lshlrev_b32 v{A0}, 3, v0"); I(f"v_lshlrev_b32 v{A1}, 1, v0")
    I(f"v_mfma_f32_16x16x4_f32 v[{X}:{X+3}], v{ONE}, v{DEN}, 0")
    I(f"v_lshlrev_b32 v{RA[2]}, 2, v0"); I(f"v_add_u32 v{RA[2]}, {PL}, v{RA[2]}")
    I(f"v_subrev_u32 v{T0}, 32, v{PGA}"); I(f"v_subrev_u32 v{RA[3]}, 32, v{CA}")
    perms(range(4))
    I(f"ds_write_b32 v{T0}, v{X}")
    def mm(r): I(f"v_mfma_f32_16x16x32_bf16 v[{ACC}:{ACC+3}], v[{OM+4*r}:{OM+4*r+3}], v[{KR+4*r}:{KR+4*r+3}], v[{ACC}:{ACC+3}]")
    def rd(r): I(f"ds_read_b128 v[{KR+4*r}:{KR+4*r+3}], v{RA[0]} offset:{1024*r}")
    def v_mm():
        for r in range(4): rd(r)
        for r in range(4):
            I(f"s_waitcnt lgkmcnt({3-r})"); mm(r)
    C("---- phase 2 (the requests of the last pass are out of range and read nothing) ----")
    A("L_vloop:")
    top()
    I(f"v_add_u32 v{RA[0]}, s72, v{L16}")
    for j, f in enumerate((v_mm, p_read, lambda: perms([0,1]), lambda: perms([2,3], False))):
        wait(j); ld(j); f()
    I("s_cmp_lg_u32 s48, s22")
    I("s_cbranch_scc1 L_vloop")
    I(f"v_xor_b32 v{RA[0]}, 0x1000, v{RA[0]}", "last tile")
    I("s_waitcnt vmcnt(5)")
    for r in range(3): rd(r)
    for r in range(3):
        I(f"s_waitcnt lgkmcnt({2-r})"); mm(r)
    I("s_waitcnt vmcnt(4)")
    rd(3)
    I("s_waitcnt lgkmcnt(0)")
    mm(3)
    I("s_nop 6")
    I("s_cmpk_ge_u32 s70, 128")
    I(f"ds_write_b128 v{RA[1]}, v[{ACC}:{ACC+3}]")
    I("s_waitcnt lgkmcnt(0)")
    I("s_barrier", "the helper joins once it has seen the flag")
    I("s_cbranch_scc1 L_end")
    C("---- waves 0,1: one output element per lane ----")
    I(f"ds_read_b128 v[48:51], v{RA[3]}")
    for w in range(4): I(f"ds_read2st64_b32 v[{40+2*w}:{41+2*w}], v{RA[2]} offset0:{8*w} offset1:{8*w+2}")
    I("s_waitcnt lgkmcnt(2)")
    I("v_pk_add_f32 v[48:49], v[48:49], v[50:51]"); I("v_pk_add_f32 v[40:41], v[40:41], v[42:43]")
    I("v_add_f32 v53, v48, v49")
    I("s_waitcnt lgkmcnt(0)")
    I("v_pk_add_f32 v[44:45], v[44:45], v[46:47]")
    I("v_and_b32 v43, 0x7fffffff, v53", "sign bit set = empty slot")
    I("v_pk_add_f32 v[40:41], v[40:41], v[44:45]")
    I("v_add_f32 v42, v40, v41")
    I(f"buffer_atomic_swap_x2 v[42:43], v{A0}, s[44:47], 0 offen sc0")
    I("v_add_f32 v52, v40, v41")
    I("s_waitcnt vmcnt(0)")
    I("v_cmp_le_i32 vcc, 0, v43")
    I("v_pk_add_f32 v[42:43], v[42:43], v[52:53]")
    I("s_and_saveexec_b64 s[56:57], vcc")
    I("s_cbranch_execz L_end", "first of the two halves: the partner finishes")
    I("v_add_f32 v43, s54, v43"); I("v_rcp_f32 v44, v43"); I("s_nop 0")
    I("v_mul_f32 v42, v42, v44")
    I("v_cvt_pk_bf16_f32 v42, v42, v42")
    I(f"buffer_store_short v42, v{A1}, s[36:39], 0 offen")
    A("L_end:")
    I("s_endpgm")
    C("---- helper: flag, rank checkpoints, flag check ----")
    A("L_control:")
    I("s_and_b32 s57, s50, 15"); I("s_lshl_b32 s57, 1, s57", "bit of the workgroup that empties this head's slot")
    I("s_cmp_lg_u32 s19, 0")
    I("s_cbranch_scc1 L_h2")
    I("s_waitcnt vmcnt(0)")
    I("s_atomic_or s57, s[14:15], 0")
    A("L_h2:")
    I("s_bfe_u32 s52, s2, 0x30003"); I("s_lshl_b32 s52, s52, 8"); I(f"s_add_u32 s52, s52, {CB:#x}", "counter of this group of 32 workgroups")
    for i in range(4): I(f"s_mov_b32 s{80+i}, {sum(lvn[8*i+j] << (4*j) for j in range(8)):#x}", "depth level by rank, 4 bits each" if i == 0 else None)
    cm = sum(1 << x for x in cps)
    I(f"s_mov_b32 s84, {cm & 0xffffffff:#x}", "checkpoint iterations"); I(f"s_mov_b32 s85, {cm >> 32:#x}")
    A("L_next:")
    I("s_ff1_i32_b64 s53, s[84:85]")
    I("s_cmp_lt_i32 s53, 0")
    I("s_cbranch_scc1 L_flag")
    I("s_bitset0_b64 s[84:85], s53")
    I("s_lshl_b32 s53, s53, 2")
    A("L_poll:")
    I(f"s_sleep {slp}", "back off between LDS polls"); I("ds_read_b128 v[4:7], v1 offset:16"); I("s_waitcnt lgkmcnt(0)")
    I("v_add_u32 v4, v4, v5"); I("v_add3_u32 v4, v4, v6, v7"); I("s_nop 0"); I("v_readfirstlane_b32 s55, v4"); I("s_nop 1")
    I("s_cmp_lt_u32 s55, s53"); I("s_cbranch_scc1 L_poll")
    I("s_mov_b32 s55, 1"); I("s_atomic_add s55, s[16:17], s52 glc")
    I("s_waitcnt lgkmcnt(0)")
    I("s_addk_i32 s52, 2048")
    I("s_add_u32 s55, s55, 1", "arrival rank")
    I("s_bitcmp1_b32 s55, 4"); I("s_cselect_b64 s[58:59], s[82:83], s[80:81]")
    I("s_lshl_b32 s55, s55, 2"); I("s_lshr_b64 s[58:59], s[58:59], s55"); I("s_and_b32 s58, s58, 15")
    I("v_mov_b32 v2, s58"); I("ds_write_b32 v1, v2")
    I("s_branch L_next")
    A("L_flag:")
    I("s_load_dword s20, s[14:15], 0")
    A("L_flag1:")
    I("s_waitcnt lgkmcnt(0)")
    I("s_and_b32 s20, s20, s57")
    I("s_cbranch_scc1 L_hend")
    I("s_sleep 16")
    I("s_atomic_or s20, s[14:15], 0 glc", "not seen yet (s20 = 0): read it at the memory side")
    I("s_branch L_flag1")
    A("L_hend:")
    I("s_barrier", "closing barrier of the workgroup")
    I("s_endpgm")
    A('.section .rodata,"a"'); A(".p2align 6"); A(f".amdhsa_kernel {NAME}")
    A("  .amdhsa_next_free_vgpr 80"); A("  .amdhsa_next_free_sgpr 88"); A("  .amdhsa_accum_offset 80")
    A("  .amdhsa_group_segment_fixed_size 0"); A("  .amdhsa_kernarg_size 56"); A("  .amdhsa_user_sgpr_count 2")
    A("  .amdhsa_user_sgpr_kernarg_segment_ptr 1"); A("  .amdhsa_system_sgpr_workgroup_id_x 1")
    A("  .amdhsa_float_denorm_mode_32 3")
    A(".end_amdhsa_kernel")
    return "\n".join(L)+"\n"
if __name__ == "__main__":
    open(sys.argv[1], "w").write(gen(test=int(sys.argv[2]) if len(sys.argv) > 2 else 0))
```

```python
import sys, struct, math, os
def f2u(x): return struct.unpack('<I', struct.pack('<f', x))[0]
HEADER = """; Kernarg layout for this problem (56 bytes, ptrs only, base s[0:1]):
;   offset  32: d_out     shape=(4, 32, 1, 128) dtype=bfloat16 (2 bytes/elem)
"""
NAME = "standalone__linear_kernel_rfa__decode_kernel"

def gen(tm="tctttt", flags="nt", stamps=0, fixed=0, tl=0, tag=0, ib=8, slp=3, ts=0, lv='0011223344556677888999aaabbbccdf', l0=6,
        cps='9.18.27.36.44.51.56.60', so='312', neg=4, pst=0, wv=0, iw=2, io=2, enc=-1, em='s', eo=0, dg=0, nr=0, hop2=0, qfirst=1, peel=2, qa=1, ack=1, gb=3, cst=None, lv2=None, sw=99, fe=1, cnt=0, loc=0, cc=0, bl=4, rb=0, al=0):
    if dg: tl = 1
    if enc >= 0: fixed = 80
    if enc >= 70: pst = 2
    L = []; A = L.append
    def I(s): A("    "+s)
    def C(s): A("    ; "+s)
    so = [int(c) for c in str(so)]
    lv = str(lv); lv = "".join(ch*(32//len(lv)) for ch in lv); lvn = [int(ch, 16) for ch in lv]
    cpl = [int(x) for x in str(cps).split('.')]; assert len(cpl) <= 24
    if cst is None: cst = 256 << gb
    creg = -(-(len(cpl)*cst) // 0x4000)*0x4000
    tpos = [14+i for i,ch in enumerate(tm) if ch == 't']; mem_p = 14+tm.index('c')
    tmask = sum(1 << p for p in tpos) | (1 << 20); t1 = 1 << tpos[0]
    CB = 0x20000
    PL = 65536; OML = PL+8192; QL = OML+2048; DL = QL+2048; CL = DL+32
    lds = DL+96
    scale = 128**-0.25
    c1 = scale*math.log2(math.e); cneg = -0.5*scale; ism = 8**-0.5
    A(HEADER.rstrip())
    A(f"; @launch grid=(256,1,1) block=(320,1,1) lds={lds}")
    A('.amdgcn_target "amdgcn-amd-amdhsa--gfx950"')
    A(".text"); A(f".globl {NAME}"); (A(f".p2align {al}") if al else None); A(".p2align 8"); A(f".type {NAME},@function"); A(f"{NAME}:")
    VO = [1,2,3,4]; VOL = 5; RA = [6,7,8,9]; SEL = [10,11,12,13]; CNEG, ONE = 14, 15
    ACC, X, W = 16, 20, 24
    RB, PA, A0, A1, BB, DEN, N0, N1, T0, T1, PAT, L16 = 28, 29, 30, 31, 32, 33, 34, 35, 36, 37, 38, 39
    OM = 40; KR = 56; CA, PRG, PGA = 72, 73, 74; PQ = 76; TLV, TLL = 80, 81
    nv = 116 if peel == 3 else (82 if tl else 80)
    I("s_load_dwordx8 s[4:11], s[0:1], 0        ; q, k, v, omega")
    I("s_load_dwordx4 s[12:15], s[0:1], 32")
    I("s_load_dwordx2 s[16:17], s[0:1], 48      ; ws")
    if stamps or fixed or cnt: I("s_memrealtime s[60:61]")
    I("v_readfirstlane_b32 s70, v0              ; 64 * wave")
    I("s_cmpk_ge_u32 s2, 256")
    I("s_cbranch_scc1 L_end")
    I(f"v_and_b32 v{L16}, 63, v0")
    if loc: I("s_and_b32 s50, s2, 3"); I("s_lshr_b32 s18, s2, 3"); I("s_lshl2_add_u32 s50, s18, s50")
    else: I("s_and_b32 s50, s2, 7"); I("s_lshr_b32 s18, s2, 4"); I("s_lshl3_add_u32 s50, s18, s50            ; head")
    I(f"v_lshlrev_b32 v{L16}, 4, v{L16}              ; lane * 16")
    I("s_mov_b32 s23, 0x20000")
    I("s_sub_u32 s70, s70, 64")
    I("s_cbranch_scc0 L_stream")
    C("---- helper: 16 workgroups first reset the hand-off slots and the rank counters ----")
    I(f"s_and_b32 s19, s2, {0xe4 if loc else 0xe8:#x}")
    I("s_cbranch_scc1 L_helper")
    I("s_lshl_b32 s18, s50, 10")
    I(f"s_mov_b32 s22, {CB+creg:#x}")
    for r in range(4): I(f"v_mov_b32 v{W+r}, -1")
    I("s_waitcnt lgkmcnt(0)")
    I("s_mov_b64 s[20:21], s[16:17]")
    A("L_init:")
    I(f"buffer_store_dwordx4 v[{W}:{W+3}], v{L16}, s[20:23], s18 offen sc0 sc1")
    I("s_addk_i32 s18, 0x4000")
    I("s_cmp_lt_u32 s18, s22")
    I("s_cbranch_scc1 L_init")
    I("s_branch L_helper")
    A("L_stream:")
    I("s_setprio 3")
    if loc:
        I("s_lshl_b32 s3, s2, 1"); I("s_xor_b32 s3, s3, s2"); I("s_and_b32 s3, s3, 4"); I("s_lshl_b32 s3, s3, 11")
        if cc: I("s_xor_b32 s3, s3, 0x2000")
        I("s_and_b32 s18, s70, 64"); I("s_lshl_b32 s18, s18, 6"); I("s_or_b32 s3, s3, s18")
        I("s_and_b32 s18, s70, 128"); I(f"s_lshl_b32 s18, s18, {mem_p-7}"); I("s_or_b32 s3, s3, s18")
        if loc == 2: I("s_cmpk_eq_u32 s70, 192"); I("s_cselect_b32 s18, 0x2000, 0"); I("s_xor_b32 s3, s3, s18")
    else:
        I("s_and_b32 s3, s2, 8"); I(f"s_lshl_b32 s3, s3, {mem_p-3}               ; member bit")
        I("s_lshl_b32 s18, s70, 6"); I("s_or_b32 s3, s3, s18                     ; + wave * 4096")
    I(f"v_add_u32 v{VOL}, s3, v{L16}")
    I(f"v_and_b32 v23, 48, v0"); I("v_lshlrev_b32 v23, 2, v23                ; g * 64")
    I(f"v_xor_b32 v{VO[0]}, v{VOL}, v23")
    for c in range(1,4): I(f"v_xor_b32 v{VO[c]}, {16*c}, v{VO[0]}")
    I("s_lshl_b32 s71, s70, 8                   ; ring base of this wave")
    I("s_lshl_b32 s19, s70, 4")
    I(f"s_add_u32 {'m0' if qfirst else 's86'}, s19, {OML}")
    if not qfirst: I("s_mov_b32 m0, s71")
    I("s_mov_b32 s31, s23"); I("s_movk_i32 s30, 256")
    I("s_lshl_b32 s18, s50, 20"); I("s_lshl_b32 s55, s50, 8")
    I("s_mov_b32 s22, 0x100000")
    I(f"s_mov_b32 s48, {t1:#x}"); I("s_movk_i32 s73, 0x1000")
    I("s_cmpk_lt_u32 s70, 128")
    I("s_cselect_b32 s19, s19, s55"); I("s_cselect_b32 s30, 1024, s30")
    I("s_waitcnt lgkmcnt(0)")
    def ld(c, so_="s48"): I(f"buffer_load_dwordx4 v{VO[c]}, s[20:23], {so_} offen offset:{1024*c} {flags} lds")
    def qld():
        I("s_cselect_b64 s[28:29], s[10:11], s[4:5]")
        I("s_add_u32 s28, s28, s19"); I("s_addc_u32 s29, s29, 0")
    if qfirst:
        qld()
        I(f"buffer_load_dwordx4 v{L16}, s[28:31], 0 offen lds      ; omega halves (waves 0,1), q (waves 2,3)")
        if pst: I("s_memrealtime s[88:89]")
        I("s_mov_b32 m0, s71")
        I("s_add_u32 s20, s6, s18"); I("s_addc_u32 s21, s7, 0")
        for c in range(4): ld(c, "0")
    else:
        qld()
        I("s_add_u32 s20, s6, s18"); I("s_addc_u32 s21, s7, 0")
        for c in range(qa): ld(c, "0")
        if pst: I("s_memrealtime s[88:89]")
        I("s_mov_b32 m0, s86"); I("s_nop 0")
        I(f"buffer_load_dwordx4 v{L16}, s[28:31], 0 offen lds")
        I("s_mov_b32 m0, s71"); I("s_nop 0")
        for c in range(qa,4): ld(c, "0")
    I("s_or_b32 m0, s71, s73")
    I("s_add_u32 s24, s8, s18")
    for c in range(ib-4): ld(c)
    if pst == 2: I("s_memrealtime s[90:91]")
    I("s_addc_u32 s25, s9, 0")
    A("L_burst_end:")
    I("v_subrev_u32 v0, 64, v0")
    I("v_and_b32 v21, 15, v0                    ; n"); I("v_bfe_u32 v22, v0, 4, 2                  ; g")
    I("v_and_b32 v16, 3, v21"); I("v_lshlrev_b32 v16, 10, v16")
    I("v_lshrrev_b32 v17, 2, v21"); I("v_lshl_add_u32 v16, v17, 8, v16          ; row(n) * 256")
    I("v_xor_b32 v18, v22, v21"); I(f"v_lshl_add_u32 v{RB}, v18, 4, v16")
    I("v_lshlrev_b32 v17, 1, v17"); I("v_and_b32 v18, 1, v21"); I("v_add_u32 v17, v17, v18")
    I("s_branch L_cont")
    A(f".fill (512 - (. - {NAME}))/4, 4, 0xbf800000")
    A("L_helper:")
    I(f"v_mov_b32 v1, {CL}"); I(f"v_mov_b32 v2, {l0}")
    for r in range(4): I(f"v_mov_b32 v{4+r}, 1")
    I("ds_write_b32 v1, v2"); I("ds_write_b128 v1, v[4:7] offset:16")
    if hop2:
        I("s_branch L_hopA")
        A("L_hopB:")
    I("s_waitcnt lgkmcnt(0)")
    I("s_barrier")
    I("s_branch L_control")
    A("L_cont:")
    I(f"s_mov_b32 s58, {OML}")
    I(f"v_lshl_add_u32 v{RA[1]}, v22, 4, s58"); I(f"v_lshl_add_u32 v{RA[0]}, v17, 8, v{RA[1]}")
    I("s_lshl_b32 s59, s70, 5"); I(f"s_add_u32 s59, s59, {PL}")
    I(f"v_lshl_add_u32 v{PA}, v21, 2, s59")
    I("v_cmp_gt_u32 vcc, 8, v21")
    I("v_mov_b32 v16, 0x0100"); I("v_mov_b32 v17, 0x0302")
    I("v_cndmask_b32 v16, v16, v17, vcc")
    I("v_cmp_eq_u32 vcc, 0, v18")
    I("v_or_b32 v17, 0x0c0c0000, v16")
    I("v_lshlrev_b32 v16, 16, v16"); I("v_or_b32 v16, 0x0c0c, v16")
    I("v_cndmask_b32 v16, v16, v17, vcc")
    I("v_bfe_u32 v18, v21, 1, 2")
    I("v_mov_b32 v17, 0x0c0c0c0c")
    for q in range(4):
        I(f"v_cmp_eq_u32 vcc, {q}, v18"); I(f"v_mov_b32 v{PQ+q}, 0"); I("s_nop 0"); I(f"v_cndmask_b32 v{SEL[q]}, v17, v16, vcc")
    I(f"v_mov_b32 v{CNEG}, {f2u(cneg):#x}")
    I(f"v_mov_b32 v{ONE}, 1.0")
    I(f"v_mov_b32 v{DEN}, 0")
    for r in range(4): I(f"v_mov_b32 v{ACC+r}, 0")
    I(f"s_mov_b32 s52, {f2u(c1):#x}"); I(f"s_mov_b32 s53, {f2u(ism):#x}"); I(f"s_mov_b32 s54, {f2u(1e-6):#x}")
    I("s_mov_b32 s74, 0x07060302")
    I(f"v_mov_b32 v{PAT}, {l0}"); I(f"v_mov_b32 v{PRG}, 1")
    if rb:
        I("s_getreg_b32 s79, hwreg(HW_REG_XCC_ID, 2, 1)"); I("s_lshr_b32 s75, s70, 7"); I("s_xor_b32 s79, s79, s75"); I("s_bfe_u32 s75, s50, 0x10001"); I("s_xor_b32 s79, s79, s75")
        I(f"s_cmp_eq_u32 s79, {cc}"); I(f"s_cselect_b32 s79, {io+rb}, {io-rb}")
    I("s_lshr_b32 s75, s70, 4"); I(f"v_mov_b32 v{CA}, {CL}"); I(f"v_add_u32 v{PGA}, s75, v{CA}")
    if tl:
        I(f"v_and_b32 v{TLL}, 63, v0"); I(f"v_mov_b32 v{TLV}, 0"); I("s_mov_b32 s78, 0")
    if pst == 1: I("s_memrealtime s[90:91]")
    I(f"s_waitcnt vmcnt({ib if qfirst else ib-qa})")
    if pst: I("s_memrealtime s[92:93]")
    I("s_barrier")
    if pst: I("s_memrealtime s[94:95]"); I("s_waitcnt lgkmcnt(0)")
    for c in range(4): I(f"ds_read_b128 v[{OM+4*c}:{OM+4*c+3}], v{RA[0]} offset:{64*c}")
    for c in range(4): I(f"ds_read_b128 v[{KR+4*c}:{KR+4*c+3}], v{RA[1]} offset:{2048+64*c}")
    def proj():
        I(f"v_mov_b32 v{N0}, 0"); I(f"v_mov_b32 v{N1}, 0")
        for c in range(4):
            I(f"s_waitcnt lgkmcnt({3-c})")
            srcc = "0" if c == 0 else f"v[{X}:{X+3}]"
            I(f"v_mfma_f32_16x16x32_bf16 v[{X}:{X+3}], v[{OM+4*c}:{OM+4*c+3}], v[{KR+4*c}:{KR+4*c+3}], {srcc}")
            for j in range(4): I(f"v_dot2c_f32_bf16 v{N0+(j&1)}, v{KR+4*c+j}, v{KR+4*c+j}")
        I("s_nop 2")
        I(f"v_add_f32 v{N0}, v{N0}, v{N1}")
        I("s_nop 1")
        I(f"v_mfma_f32_16x16x4_f32 v[{X}:{X+3}], v{CNEG}, v{N0}, v[{X}:{X+3}]")
    proj()
    I("s_add_u32 s36, s12, s55"); I("s_addc_u32 s37, s13, 0"); I("s_movk_i32 s38, 256"); I("s_mov_b32 s39, s23")
    I("s_lshl_b32 s56, s50, 10")
    I("s_add_u32 s44, s16, s56"); I("s_addc_u32 s45, s17, 0"); I("s_movk_i32 s46, 1024"); I("s_mov_b32 s47, s23")
    I(f"v_mov_b32 v{T0}, s54")
    I(f"v_mul_f32 v{A0}, s52, v{X}"); I(f"v_mul_f32 v{A1}, s52, v{X+1}")
    I(f"v_exp_f32 v{A0}, v{A0}"); I(f"v_exp_f32 v{A1}, v{A1}")
    I("s_nop 0")
    I(f"v_fma_f32 v{A0}, v{A0}, s53, v{T0}"); I(f"v_fma_f32 v{A1}, v{A1}, s53, v{T0}")
    I(f"v_add_f32 v{BB}, v{A0}, v{A1}"); I(f"v_mul_f32 v{BB}, s54, v{BB}")
    I(f"v_mul_f32 v{A0}, s53, v{A0}"); I(f"v_mul_f32 v{A1}, s53, v{A1}")
    for c in range(ib-4, 4):
        I("s_waitcnt vmcnt(4)"); ld(c)
    nlab = [0]
    def wait(j):
        if j in so:
            nlab[0] += 1
            I(f"s_cmp_ge_u32 s80, {4*(so.index(j)+1)+neg}")
            I(f"s_cbranch_scc1 L_p{nlab[0]}")
            I(f"s_waitcnt vmcnt({bl})")
            if neg and so.index(j) == 0:
                I(f"s_cmp_ge_u32 s80, {neg}")
                I(f"s_cbranch_scc1 L_p{nlab[0]}")
                I(f"s_waitcnt vmcnt({bl-1})")
            A(f"L_p{nlab[0]}:")
        else: I(f"s_waitcnt vmcnt({bl})")
    def top():
        if tl: I("s_memrealtime s[76:77]")
        if 0 <= enc < 64:
            nlab[0] += 1
            I("s_add_u32 s87, s87, 1"); I(f"s_cmp_lg_u32 s87, {enc+1}"); I(f"s_cbranch_scc1 L_e{nlab[0]}")
            I("s_memrealtime s[98:99]"); I("s_waitcnt lgkmcnt(0)"); A(f"L_e{nlab[0]}:")
        I(f"v_add3_u32 v{PQ}, v{PQ}, v{PQ+1}, v{PQ+2}")
        I(f"v_mad_i32_i24 v{PQ+3}, v{PRG}, -4, v{PQ+3}")
        I(f"v_add3_u32 v{PQ}, v{PQ}, v{PQ+3}, {'s79' if rb else io}")
        I(f"v_mad_i32_i24 v{PAT}, v{PQ}, {iw}, v{PAT}")
        I(f"v_max_i32 v{PAT}, 0, v{PAT}")
        I(f"v_add_u32 v{PRG}, 1, v{PRG}")
        I(f"v_readfirstlane_b32 s80, v{PAT}")
        I(f"ds_write_b32 v{PGA}, v{PRG} offset:16")
        I(f"ds_read_b32 v{PAT}, v{CA}")
        I(f"ds_read_b128 v[{PQ}:{PQ+3}], v{CA} offset:16")
        I(f"s_or_b32 s48, s48, {(~tmask) & 0xffffffff:#x}"); I("s_add_u32 s48, s48, 1"); I(f"s_and_b32 s48, s48, {tmask:#x}")
        I("s_addk_i32 s73, 0x1000"); I("s_and_b32 s73, s73, 0x3000"); I("s_or_b32 m0, s71, s73"); I("s_xor_b32 s72, m0, 0x2000")
        I("s_lshr_b32 s81, s73, 12"); I("s_add_u32 s80, s80, s81")
        if tl:
            I("s_waitcnt lgkmcnt(0)"); I("s_sub_u32 s76, s76, s60"); I(f"v_mov_b32 v{T1}, s76"); I(f"v_cmp_eq_u32 vcc, s78, v{TLL}"); I("s_add_u32 s78, s78, 1"); I("s_nop 0")
            I(f"v_cndmask_b32 v{TLV}, v{TLV}, v{T1}, vcc")
    def k_read():
        for c in range(4): I(f"ds_read_b128 v[{KR+4*c}:{KR+4*c+3}], v{RA[c]}")
    def k_exp():
        I("s_nop 6")
        I(f"v_mul_f32 v{T0}, s52, v{X}"); I(f"v_mul_f32 v{T1}, s52, v{X+1}")
        I(f"v_exp_f32 v{T0}, v{T0}"); I(f"v_exp_f32 v{T1}, v{T1}")
        I("s_nop 0")
        I(f"v_fma_f32 v{T0}, v{A0}, v{T0}, v{BB}"); I(f"v_fma_f32 v{T0}, v{A1}, v{T1}, v{T0}")
        I(f"v_add_f32 v{DEN}, v{DEN}, v{T0}")
        I("s_nop 0")
        I(f"v_mfma_f32_16x16x4_f32 v[{W}:{W+3}], v{ONE}, v{T0}, 0")
    def k_pack():
        I("s_nop 6")
        I(f"v_and_b32 v{T0}, 0xffff0000, v{W}"); I(f"v_sub_f32 v{T0}, v{W}, v{T0}")
        I(f"v_perm_b32 v{T0}, v{W}, v{T0}, s74")
        I("s_mov_b64 exec, 0xffff")
        I(f"ds_write_b32 v{PA}, v{T0}")
        I("s_mov_b64 exec, -1")
        I(f"v_add_u32 v{PA}, 64, v{PA}")
    assert sorted(so) == [1,2,3]
    if enc >= 0: I("s_mov_b32 s87, 0")
    A("L_kloop:")
    top()
    I("s_cmp_lg_u32 s48, s22")
    I("s_cbranch_scc1 L_kgo")
    I("s_mov_b32 s48, 0"); I("s_mov_b64 s[20:21], s[24:25]")
    for c in range(4): I(f"v_mov_b32 v{VO[c]}, v{VOL}")
    A("L_kgo:")
    I(f"v_add_u32 v{RA[0]}, s72, v{RB}")
    for c in range(1,4): I(f"v_xor_b32 v{RA[c]}, {64*c}, v{RA[0]}")
    for j, f in enumerate((k_read, proj, k_exp, k_pack)):
        wait(j); ld(j); f()
    I(f"s_cmp_lg_u32 s48, {t1:#x}")
    I("s_cbranch_scc1 L_kloop")
    def p_read():
        I(f"ds_read_b128 v[{W}:{W+3}], v{PA}")
        I(f"v_add_u32 v{PA}, 64, v{PA}")
    def perms(rs, w=True):
        if w: I("s_waitcnt lgkmcnt(0)")
        for r in rs:
            for q in range(4): I(f"v_perm_b32 v{OM+4*r+q}, v{W+r}, v{W+r}, v{SEL[q]}")
    A("L_switch:")
    I(f"v_and_b32 v{T0}, 48, v0")
    I(f"v_add_u32 v{PA}, s59, v{T0}")
    p_read()
    I(f"v_add_f32 v{DEN}, v{DEN}, v{DEN} row_ror:8")
    I(f"v_and_b32 v{T0}, 15, v0"); I(f"v_lshl_add_u32 v{RA[1]}, v{T0}, 5, s59")
    I(f"v_add_f32 v{DEN}, v{DEN}, v{DEN} row_ror:4")
    I(f"v_and_b32 v{T0}, 16, v0"); I(f"v_add_u32 v{RA[1]}, v{T0}, v{RA[1]}")
    I(f"v_add_f32 v{DEN}, v{DEN}, v{DEN} row_ror:2")
    I(f"v_and_b32 v{T0}, 32, v0"); I(f"v_lshl_add_u32 v{RA[1]}, v{T0}, 4, v{RA[1]}")
    I(f"v_add_f32 v{DEN}, v{DEN}, v{DEN} row_ror:1")
    I(f"v_lshlrev_b32 v{A0}, 3, v0"); I(f"v_lshlrev_b32 v{A1}, 1, v0")
    I(f"v_mfma_f32_16x16x4_f32 v[{X}:{X+3}], v{ONE}, v{DEN}, 0")
    I(f"v_lshlrev_b32 v{RA[2]}, 2, v0"); I(f"v_add_u32 v{RA[2]}, {PL}, v{RA[2]}")
    I(f"v_subrev_u32 v{T0}, 32, v{PGA}"); I(f"v_subrev_u32 v{RA[3]}, 32, v{CA}")
    perms(range(4))
    I(f"ds_write_b32 v{T0}, v{X}")
    def v_mm():
        for r in range(4): I(f"ds_read_b128 v[{KR+4*r}:{KR+4*r+3}], v{RA[0]} offset:{1024*r}")
        for r in range(4):
            I(f"s_waitcnt lgkmcnt({3-r})")
            I(f"v_mfma_f32_16x16x32_bf16 v[{ACC}:{ACC+3}], v[{OM+4*r}:{OM+4*r+3}], v[{KR+4*r}:{KR+4*r+3}], v[{ACC}:{ACC+3}]")
        if not peel:
            I(f"s_cmp_eq_u32 s48, {0x100000+t1:#x}")
            I("s_cbranch_scc1 L_done")
    A("L_vloop:")
    top()
    I(f"v_add_u32 v{RA[0]}, s72, v{L16}")
    for j, f in enumerate((v_mm, p_read, lambda: perms([0,1]), lambda: perms([2,3], False))):
        wait(j); ld(j); f()
    if not peel:
        I("s_branch L_vloop")
    elif peel == 3:
        A2, K2 = 84, 100
        def mm(r, a=OM, k=KR): I(f"v_mfma_f32_16x16x32_bf16 v[{ACC}:{ACC+3}], v[{a+4*r}:{a+4*r+3}], v[{k+4*r}:{k+4*r+3}], v[{ACC}:{ACC+3}]")
        def rd(r, k=KR, o=0): I(f"ds_read_b128 v[{k+4*r}:{k+4*r+3}], v{RA[0]} offset:{o+1024*r}")
        I(f"s_cmp_lg_u32 s48, {tmask & 0xfffff:#x}")
        I("s_cbranch_scc1 L_vloop")
        I(f"ds_read_b128 v[{W}:{W+3}], v{PA}")
        I(f"v_xor_b32 v{RA[0]}, 0x3000, v{RA[0]}")
        I("s_waitcnt lgkmcnt(0)")
        for r in range(4):
            for q in range(4): I(f"v_perm_b32 v{A2+4*r+q}, v{W+r}, v{W+r}, v{SEL[q]}")
        I("s_waitcnt vmcnt(4)")
        for r in range(4): rd(r)
        I("s_waitcnt vmcnt(1)")
        for r in range(3): rd(r, K2, 4096)
        for r in range(4):
            I(f"s_waitcnt lgkmcnt({6-r})"); mm(r)
        I("s_waitcnt vmcnt(0)")
        rd(3, K2, 4096)
        for r in range(4):
            I(f"s_waitcnt lgkmcnt({3-r})"); mm(r, A2, K2)
        I("s_nop 1")
    elif peel == 2:
        def mm(r): I(f"v_mfma_f32_16x16x32_bf16 v[{ACC}:{ACC+3}], v[{OM+4*r}:{OM+4*r+3}], v[{KR+4*r}:{KR+4*r+3}], v[{ACC}:{ACC+3}]")
        def rd(r): I(f"ds_read_b128 v[{KR+4*r}:{KR+4*r+3}], v{RA[0]} offset:{1024*r}")
        I(f"s_cmp_lg_u32 s48, {tmask & 0xfffff:#x}")
        I("s_cbranch_scc1 L_vloop")
        I(f"v_xor_b32 v{RA[0]}, 0x3000, v{RA[0]}")
        I("s_waitcnt vmcnt(4)")
        for r in range(4): rd(r)
        I(f"ds_read_b128 v[{W}:{W+3}], v{PA}")
        for r in range(4):
            I(f"s_waitcnt lgkmcnt({4-r})"); mm(r)
        I(f"v_xor_b32 v{RA[0]}, 0x1000, v{RA[0]}")
        perms(range(4))
        I("s_waitcnt vmcnt(1)")
        for r in range(3): rd(r)
        for r in range(3):
            I(f"s_waitcnt lgkmcnt({2-r})"); mm(r)
        I("s_waitcnt vmcnt(0)")
        rd(3)
        I("s_waitcnt lgkmcnt(0)")
        mm(3)
        I("s_nop 1")
    else:
        I("s_cmp_lg_u32 s48, s22")
        I("s_cbranch_scc1 L_vloop")
        I(f"v_xor_b32 v{RA[0]}, 0x1000, v{RA[0]}")
        I("s_waitcnt vmcnt(5)")
        for r in range(3): I(f"ds_read_b128 v[{KR+4*r}:{KR+4*r+3}], v{RA[0]} offset:{1024*r}")
        for r in range(3):
            I(f"s_waitcnt lgkmcnt({2-r})")
            I(f"v_mfma_f32_16x16x32_bf16 v[{ACC}:{ACC+3}], v[{OM+4*r}:{OM+4*r+3}], v[{KR+4*r}:{KR+4*r+3}], v[{ACC}:{ACC+3}]")
        I("s_waitcnt vmcnt(4)")
        I(f"ds_read_b128 v[{KR+12}:{KR+15}], v{RA[0]} offset:3072")
        I("s_waitcnt lgkmcnt(0)")
        I(f"v_mfma_f32_16x16x32_bf16 v[{ACC}:{ACC+3}], v[{OM+12}:{OM+15}], v[{KR+12}:{KR+15}], v[{ACC}:{ACC+3}]")
        I("s_nop 1")
    A("L_done:")
    if stamps: I("s_memrealtime s[62:63]")
    if enc == 64: I("s_memrealtime s[98:99]")
    if wv:
        I("s_waitcnt lgkmcnt(0)"); I(f"v_mov_b32 v{T1}, s62"); I(f"ds_write_b32 v{PGA}, v{T1} offset:32")
    if ts: I("s_memtime s[88:89]")
    I("s_nop 4")
    I("s_cmpk_ge_u32 s70, 128")
    I(f"ds_write_b128 v{RA[1]}, v[{ACC}:{ACC+3}]")
    I("s_waitcnt lgkmcnt(0)")
    I("s_barrier")
    I("s_cbranch_scc1 L_end")
    if ts: I("s_memtime s[90:91]")
    I(f"ds_read_b128 v[48:51], v{RA[3]}")
    for w in range(4): I(f"ds_read2st64_b32 v[{40+2*w}:{41+2*w}], v{RA[2]} offset0:{8*w} offset1:{8*w+2}")
    I("s_waitcnt lgkmcnt(2)" if not ts else "s_waitcnt lgkmcnt(0)")
    I("v_pk_add_f32 v[48:49], v[48:49], v[50:51]"); I("v_pk_add_f32 v[40:41], v[40:41], v[42:43]")
    I("v_add_f32 v53, v48, v49")
    I("s_waitcnt lgkmcnt(0)")
    I("v_pk_add_f32 v[44:45], v[44:45], v[46:47]")
    I("v_and_b32 v43, 0x7fffffff, v53")
    I("v_pk_add_f32 v[40:41], v[40:41], v[44:45]")
    I("v_add_f32 v42, v40, v41")
    if ts: I("s_memtime s[92:93]")
    I(f"buffer_atomic_swap_x2 v[42:43], v{A0}, s[44:47], 0 offen sc0")
    I("v_add_f32 v52, v40, v41")
    I("s_waitcnt vmcnt(0)")
    if ts: I("s_memtime s[94:95]")
    I("v_cmp_le_i32 vcc, 0, v43")
    I("v_pk_add_f32 v[42:43], v[42:43], v[52:53]")
    I("s_and_saveexec_b64 s[56:57], vcc")
    I("s_cbranch_execz L_fin")
    I("v_add_f32 v43, s54, v43"); I("v_rcp_f32 v44, v43"); I("s_nop 0")
    if nr: I("v_fma_f32 v45, -v43, v44, 1.0"); I("v_fma_f32 v44, v45, v44, v44")
    I("v_mul_f32 v42, v42, v44")
    I("v_cvt_pk_bf16_f32 v42, v42, v42")
    I(f"buffer_store_short v42, v{A1}, s[36:39], 0 offen")
    A("L_fin:")
    if fixed or stamps:
        I("s_mov_b64 exec, -1")
        I("s_cmp_lg_u32 s70, 0"); I("s_cbranch_scc1 L_end")
        if ack: I("s_waitcnt vmcnt(0)")
    if enc >= 0:
        if enc == 65: I("s_memrealtime s[98:99]")
        if enc >= 70: I(f"s_mov_b32 s98, s{88+2*(enc-70)}")
        I("s_waitcnt lgkmcnt(0)")
        I("s_sub_u32 s98, s98, s60")
        for lab, t in (("L_s1", 5500), ("L_s2", 7000)):
            A(lab+":")
            I("s_memrealtime s[68:69]"); I("s_waitcnt lgkmcnt(0)"); I("s_sub_u32 s68, s68, s60")
            I(f"s_cmp_lt_u32 s68, {t}"); I(f"s_cbranch_scc1 {lab}")
            if lab == "L_s1":
                if dg:
                    I("s_mov_b32 s40, s14"); I("s_mov_b32 s41, s15"); I("s_movk_i32 s42, 256"); I("s_mov_b32 s43, 0x20000")
                    mk = sum(1 << x for x in (0,1,2,3,4,5,6,8,10,14,30,46,62))
                    I(f"s_mov_b32 exec_lo, {mk & 0xffffffff:#x}"); I(f"s_mov_b32 exec_hi, {mk >> 32:#x}")
                    I(f"v_mbcnt_lo_u32_b32 v{TLL}, exec_lo, 0"); I(f"v_mbcnt_hi_u32_b32 v{TLL}, exec_hi, v{TLL}"); I(f"v_lshlrev_b32 v{TLL}, 2, v{TLL}")
                    I(f"buffer_atomic_add v{TLV}, v{TLL}, s[40:43], 0 offen offset:4")
                    I("s_mov_b64 exec, -1")
                if em == 'G':
                    I("s_and_b32 s99, s60, 0xfffff"); I("s_add_u32 s98, s98, s99"); I("s_atomic_add s99, s[14:15], 60")
                I(("s_atomic_add" if em == 's' else "s_atomic_umax") + " s98, s[14:15], 56"); I("s_waitcnt lgkmcnt(0)")
        I("s_mov_b32 s98, 0"); I("s_atomic_or s98, s[14:15], 56 glc"); I("s_waitcnt lgkmcnt(0)")
        if em == 'G':
            I("s_mov_b32 s99, 0"); I("s_atomic_or s99, s[14:15], 60 glc"); I("s_waitcnt lgkmcnt(0)"); I("s_lshr_b32 s99, s99, 8"); I("s_sub_u32 s98, s98, s99")
        I("s_mul_i32 s98, s98, 10")
        if em == 's': I("s_lshr_b32 s98, s98, 8")
        I(f"s_sub_i32 s98, s98, {eo*1000}"); I("s_max_i32 s98, s98, 0"); I("s_min_i32 s98, s98, 15000")
        I("s_add_u32 s60, s60, s98")
    if fixed:
        A("L_spin:")
        I("s_memrealtime s[68:69]"); I("s_waitcnt lgkmcnt(0)"); I("s_sub_u32 s68, s68, s60")
        I(f"s_cmp_lt_i32 s68, {fixed*100}"); I("s_cbranch_scc1 L_spin")
    if stamps:
        if ts:
            I("s_waitcnt vmcnt(0)"); I("s_memtime s[96:97]")
        I("s_memrealtime s[64:65]")
        I("s_getreg_b32 s66, hwreg(HW_REG_XCC_ID)"); I("s_getreg_b32 s67, hwreg(HW_REG_HW_ID)")
        I("s_waitcnt lgkmcnt(0)")
        I("s_mov_b32 s61, 0"); I("s_sub_u32 s63, s64, s62")
        if wv:
            I(f"ds_read_b128 v[40:43], v{CA} offset:32"); I("s_waitcnt lgkmcnt(0)")
            for r in range(4): I(f"v_readfirstlane_b32 s{88+2*r}, v{40+r}")
            I("s_nop 1")
            for r in (88,90,92,94): I(f"s_sub_u32 s{r}, s64, s{r}")
            I("s_pack_ll_b32_b16 s61, s88, s90"); I("s_pack_ll_b32_b16 s65, s92, s94")
        if pst:
            for r in (88,90,92,94): I(f"s_sub_u32 s{r}, s{r}, s60")
            I("s_pack_ll_b32_b16 s61, s88, s90"); I("s_pack_ll_b32_b16 s65, s92, s94")
        if ts:
            I("s_sub_u32 s96, s96, s94"); I("s_sub_u32 s94, s94, s92"); I("s_sub_u32 s92, s92, s90"); I("s_sub_u32 s90, s90, s88")
            I("s_pack_ll_b32_b16 s61, s90, s92"); I("s_pack_ll_b32_b16 s65, s94, s96")
        for j in range(8): I(f"v_mov_b32 v{20+j}, s{60+j}")
        I("s_add_u32 s44, s16, 0x100000"); I("s_addc_u32 s45, s17, 0"); I("s_mov_b32 s46, 0x100000")
        if tl:
            I("s_lshl_b32 s55, s2, 8"); I("s_add_u32 s55, s55, 0x80000"); I(f"v_lshlrev_b32 v{TLL}, 2, v{TLL}")
            I(f"buffer_store_dword v{TLV}, v{TLL}, s[44:47], s55 offen")
        I("s_lshl_b32 s55, s2, 5"); I("v_mov_b32 v14, 0"); I("s_mov_b64 exec, 1")
        I("buffer_store_dwordx4 v[20:23], v14, s[44:47], s55 offen")
        I("buffer_store_dwordx4 v[24:27], v14, s[44:47], s55 offen offset:16")
    A("L_end:")
    I("s_endpgm")
    if hop2:
        A("L_hopA:")
        I("s_branch L_hopB")
    A("L_control:")
    I("s_and_b32 s57, s50, 15"); I("s_lshl_b32 s57, 1, s57")
    I("s_cmp_lg_u32 s19, 0")
    I("s_cbranch_scc1 L_h2")
    I("s_waitcnt vmcnt(0)")
    I("s_atomic_or s57, s[14:15], 0")
    if cnt:
        I("s_memrealtime s[28:29]"); I("s_waitcnt lgkmcnt(0)"); I("s_sub_u32 s28, s28, s60"); I("s_atomic_umax s28, s[14:15], 12")
    A("L_h2:")
    I("s_mov_b32 s26, 0")
    I(f"s_bfe_u32 s52, s2, {(gb << 16) | 3:#x}"); I("s_lshl_b32 s52, s52, 8"); I(f"s_add_u32 s52, s52, {CB:#x}")
    for i in range(4): I(f"s_mov_b32 s{80+i}, {sum(lvn[8*i+j] << (4*j) for j in range(8)):#x}")
    cm = sum(1 << x for x in cpl)
    I(f"s_mov_b32 s84, {cm & 0xffffffff:#x}"); I(f"s_mov_b32 s85, {cm >> 32:#x}")
    A("L_hl:")
    I("s_ff1_i32_b64 s53, s[84:85]")
    I("s_cmp_lt_i32 s53, 0")
    I("s_cbranch_scc1 L_hf")
    I("s_bitset0_b64 s[84:85], s53")
    if lv2:
        l2 = [int(ch, 16) for ch in str(lv2) for _ in range(32//len(str(lv2)))]
        I(f"s_cmp_lt_u32 s53, {sw}"); I("s_cbranch_scc1 L_keep")
        for i in range(4): I(f"s_mov_b32 s{80+i}, {sum(l2[8*i+j] << (4*j) for j in range(8)):#x}")
        A("L_keep:")
    I("s_lshl_b32 s53, s53, 2")
    A("L_hp:")
    I(f"s_sleep {slp}"); I("ds_read_b128 v[4:7], v1 offset:16"); I("s_waitcnt lgkmcnt(0)")
    I("v_add_u32 v4, v4, v5"); I("v_add3_u32 v4, v4, v6, v7"); I("s_nop 0"); I("v_readfirstlane_b32 s55, v4"); I("s_nop 1")
    I("s_cmp_lt_u32 s55, s53"); I("s_cbranch_scc1 L_hp")
    if fe:
        I("s_cmpk_eq_u32 s26, 0xffff"); I("s_cbranch_scc1 L_rank")
        I("s_load_dword s26, s[14:15], 0")
        A("L_f1:")
        I("s_waitcnt lgkmcnt(0)")
        I("s_and_b32 s26, s26, 0xffff"); I("s_cmpk_eq_u32 s26, 0xffff"); I("s_cbranch_scc1 L_rank")
        if cnt: I("s_mov_b32 s27, 1"); I("s_atomic_add s27, s[14:15], 8")
        I("s_sleep 16"); I("s_mov_b32 s26, 0"); I("s_atomic_or s26, s[14:15], 0 glc"); I("s_branch L_f1")
        A("L_rank:")
    I("s_mov_b32 s55, 1"); I("s_atomic_add s55, s[16:17], s52 glc")
    I("s_waitcnt lgkmcnt(0)")
    I(f"s_addk_i32 s52, {cst}")
    I("s_add_u32 s55, s55, 1")
    if gb < 3: I(f"s_lshr_b32 s55, s55, {3-gb}")
    if gb > 3: I(f"s_lshl_b32 s55, s55, {gb-3}"); I(f"s_add_u32 s55, s55, {(1 << (gb-3))//2}")
    I("s_bitcmp1_b32 s55, 4"); I("s_cselect_b64 s[58:59], s[82:83], s[80:81]")
    I("s_lshl_b32 s55, s55, 2"); I("s_lshr_b64 s[58:59], s[58:59], s55"); I("s_and_b32 s58, s58, 15")
    I("v_mov_b32 v2, s58"); I("ds_write_b32 v1, v2")
    I("s_branch L_hl")
    A("L_hf:")
    if not fe:
        I("s_load_dword s20, s[14:15], 0")
        A("L_hf1:")
        I("s_waitcnt lgkmcnt(0)")
        I("s_and_b32 s20, s20, s57")
        I("s_cbranch_scc1 L_hx")
        I("s_sleep 16")
        I("s_atomic_or s20, s[14:15], 0 glc")
        I("s_branch L_hf1")
    A("L_hx:")
    I("s_barrier")
    I("s_endpgm")
    A('.section .rodata,"a"'); A(".p2align 6"); A(f".amdhsa_kernel {NAME}")
    A(f"  .amdhsa_next_free_vgpr {nv}"); A(f"  .amdhsa_next_free_sgpr {100 if (stamps or fixed) else 88}"); A(f"  .amdhsa_accum_offset {(nv+3)//4*4}")
    A("  .amdhsa_group_segment_fixed_size 0"); A("  .amdhsa_kernarg_size 56"); A("  .amdhsa_user_sgpr_count 2")
    A("  .amdhsa_user_sgpr_kernarg_segment_ptr 1"); A("  .amdhsa_system_sgpr_workgroup_id_x 1")
    A("  .amdhsa_float_denorm_mode_32 3")
    A(".end_amdhsa_kernel")
    return "\n".join(L)+"\n"

if __name__ == "__main__":
    d = sys.argv[1]
    os.makedirs(d, exist_ok=True)
    for spec in sys.argv[2:]:
        kv = {}
        for t in spec.split(","):
            if not t or t == "base": continue
            k, v = t.split("=")
            kv[k] = v if k in ('lv','cps','so','tm','em','lv2') else (int(v, 0) if v[0].isdigit() else v.replace("+", " "))
        name = "v10xxxxxxxxxxxx_" + spec.replace("=", "").replace(",", "_")
        open(f"{d}/{name}.s", "w").write(gen(**kv))
```

```python
import sys, struct, math
def f2u(x): return struct.unpack('<I', struct.pack('<f', x))[0]
NAME = "standalone__linear_kernel_rfa__decode_kernel"
HEADER = """; Kernarg layout for this problem (56 bytes, ptrs only, base s[0:1]):
"""
DOC = """;
;
;  * The two halves of a head meet in d_ws with one returning 8-byte swap per output element {num, den}; the lane that gets
;
"""
def isize(t):
    import re
    t = t.split(';')[0].strip()
    op = t.split()[0]
    if op.startswith(('buffer_','ds_','v_mfma','v_perm','v_fma','v_pk_','v_lshl_add','v_bfe','v_add3','v_mad','v_cvt_pk','s_load','s_atomic')): return 8
    if op.startswith(('s_nop','s_waitcnt','s_sleep','s_movk','s_addk','s_cmpk','s_cbranch','s_branch','s_setprio')): return 4
    for x in re.findall(r'(?<![\w\[:.])(0x[0-9a-fA-F]+|\d+)(?![\w\]:(.])', t.split(None,1)[1]):
        if int(x, 0) > 64: return 8
    return 4

def gen(lv='0011223344556677888999aaabbbccdf', l0=6, cps=(9,18,27,36,44,51,56,60), neg=4, iw=2, io=2, slp=3, test=0):
    L = []; A = L.append; off = [0]
    def I(s, c=None):
        off[0] += isize(s) if ' ' in s else 4
        A("    " + (s if c is None else f"{s:<64}; {c}"))
    def C(s): A("    ; " + s)
    lvn = [int(ch, 16) for ch in lv for _ in range(32//len(lv))]
    tmask = 0x1f4000
    CB = 0x20000
    PL = 65536; OML = PL+8192; QL = OML+2048; DL = QL+2048; CL = DL+32
    lds = DL+64
    scale = 128**-0.25
    c1 = scale*math.log2(math.e); cneg = -0.5*scale; ism = 8**-0.5
    A(HEADER.rstrip())
    A(f"; @launch grid=(256,1,1) block=(320,1,1) lds={lds}")
    A(DOC.rstrip())
    A('.amdgcn_target "amdgcn-amd-amdhsa--gfx950"')
    A(".text"); A(f".globl {NAME}"); A(".p2align 12        ; the whole kernel inside one 4-KiB page (instruction prefetch stops at page ends)"); A(".p2align 8"); A(f".type {NAME},@function"); A(f"{NAME}:")
    VO = [1,2,3,4]; VOL = 5; RA = [6,7,8,9]; SEL = [10,11,12,13]; CNEG, ONE = 14, 15
    ACC, X, W = 16, 20, 24
    RB, PA, A0, A1, BB, DEN, N0, N1, T0, T1, LVL, L16 = 28, 29, 30, 31, 32, 33, 34, 35, 36, 37, 38, 39
    OM = 40; KR = 56; CA, PRG, PGA = 72, 73, 74; PQ = 76
    I("s_load_dwordx8 s[4:11], s[0:1], 0", "q, k, v, omega")
    I("s_load_dwordx4 s[12:15], s[0:1], 32", "out, debug")
    I("s_load_dwordx2 s[16:17], s[0:1], 48", "ws")
    I("v_readfirstlane_b32 s70, v0", "64 * wave")
    I("s_cmpk_ge_u32 s2, 256")
    I("s_cbranch_scc1 L_end", "workgroups past the data leave")
    I(f"v_and_b32 v{L16}, 63, v0")
    I("s_and_b32 s50, s2, 7"); I("s_lshr_b32 s18, s2, 4"); I("s_lshl3_add_u32 s50, s18, s50", "head; bit 3 of the id picks the half")
    I(f"v_lshlrev_b32 v{L16}, 4, v{L16}", "lane * 16")
    I("s_mov_b32 s23, 0x20000")
    I("s_sub_u32 s70, s70, 64", "wave 0 is the helper")
    I("s_cbranch_scc0 L_stream")
    C("---- helper of 16 workgroups: mark the hand-off slots empty and reset the rank counters (all ones) ----")
    I("s_and_b32 s19, s2, 0xe8")
    I("s_cbranch_scc1 L_helper")
    I("s_lshl_b32 s18, s50, 10")
    I(f"s_mov_b32 s22, {CB+0x4000:#x}")
    for r in range(4): I(f"v_mov_b32 v{W+r}, -1")
    I("s_waitcnt lgkmcnt(0)")
    I("s_mov_b64 s[20:21], s[16:17]")
    if test == 1:
        for _ in range(20): I("s_sleep 127")
    A("L_init:")
    I(f"buffer_store_dwordx4 v[{W}:{W+3}], v{L16}, s[20:23], s18 offen sc0 sc1")
    I("s_addk_i32 s18, 0x4000")
    I("s_cmp_lt_u32 s18, s22")
    I("s_cbranch_scc1 L_init")
    I("s_branch L_helper")
    C("---- streaming waves ----")
    A("L_stream:")
    I("s_setprio 3")
    I("s_and_b32 s3, s2, 8"); I("s_lshl_b32 s3, s3, 12", "half * 32 KiB")
    I("s_lshl_b32 s18, s70, 6"); I("s_or_b32 s3, s3, s18", "+ wave * 4 KiB")
    I(f"v_add_u32 v{VOL}, s3, v{L16}", "linear source offset (V)")
    I("v_and_b32 v23, 48, v0"); I("v_lshlrev_b32 v23, 2, v23")
    I(f"v_xor_b32 v{VO[0]}, v{VOL}, v23", "K source offsets: 16-B chunks swizzled inside each row")
    for c in range(1,4): I(f"v_xor_b32 v{VO[c]}, {16*c}, v{VO[0]}")
    I("s_lshl_b32 s71, s70, 8", "ring base of this wave")
    I("s_lshl_b32 s19, s70, 4")
    I(f"s_add_u32 m0, s19, {OML}")
    I("s_mov_b32 s31, s23"); I("s_movk_i32 s30, 256")
    I("s_lshl_b32 s18, s50, 20"); I("s_lshl_b32 s55, s50, 8")
    I("s_mov_b32 s22, 0x100000", "one head of K / V")
    I("s_movk_i32 s48, 0x4000", "tile 1"); I("s_movk_i32 s73, 0x1000", "ring slot 1")
    I("s_cmpk_lt_u32 s70, 128")
    I("s_cselect_b32 s19, s19, s55"); I("s_cselect_b32 s30, 1024, s30")
    I("s_waitcnt lgkmcnt(0)")
    def ld(c, so="s48"): I(f"buffer_load_dwordx4 v{VO[c]}, s[20:23], {so} offen offset:{1024*c} nt lds")
    I("s_cselect_b64 s[28:29], s[10:11], s[4:5]")
    I("s_add_u32 s28, s28, s19"); I("s_addc_u32 s29, s29, 0")
    I(f"buffer_load_dwordx4 v{L16}, s[28:31], 0 offen lds", "omega halves (waves 0,1), q (waves 2,3)")
    I("s_mov_b32 m0, s71")
    I("s_add_u32 s20, s6, s18"); I("s_addc_u32 s21, s7, 0")
    for c in range(4): ld(c, "0")
    I("s_or_b32 m0, s71, s73")
    I("s_add_u32 s24, s8, s18")
    for c in range(4): ld(c)
    I("s_addc_u32 s25, s9, 0", "V base kept in s[24:25]")
    S = []
    def P(s, c=None): S.append((s, c))
    P("v_subrev_u32 v0, 64, v0")
    P("v_and_b32 v21, 15, v0", "n = lane & 15"); P("v_bfe_u32 v22, v0, 4, 2", "g = lane >> 4")
    P("v_and_b32 v16, 3, v21"); P("v_lshlrev_b32 v16, 10, v16")
    P("v_lshrrev_b32 v17, 2, v21"); P("v_lshl_add_u32 v16, v17, 8, v16", "column n holds tile row 4*(n&3) + (n>>2)")
    P("v_xor_b32 v18, v22, v21"); P(f"v_lshl_add_u32 v{RB}, v18, 4, v16", "K fragment address inside a ring slot")
    P("v_lshlrev_b32 v17, 1, v17"); P("v_and_b32 v18, 1, v21"); P("v_add_u32 v17, v17, v18", "A row i holds feature 2*(i>>2) + (i&1)")
    P(f"s_mov_b32 s58, {OML}")
    P(f"v_lshl_add_u32 v{RA[1]}, v22, 4, s58"); P(f"v_lshl_add_u32 v{RA[0]}, v17, 8, v{RA[1]}")
    P("s_lshl_b32 s59, s70, 5"); P(f"s_add_u32 s59, s59, {PL}")
    P(f"v_lshl_add_u32 v{PA}, v21, 2, s59", "weight write address")
    P("v_cmp_gt_u32 vcc, 8, v21")
    P("v_mov_b32 v16, 0x0100"); P("v_mov_b32 v17, 0x0302")
    P("v_cndmask_b32 v16, v16, v17, vcc", "rows 0-7 take the hi half of a weight, rows 8-15 the lo half")
    P("v_cmp_eq_u32 vcc, 0, v18")
    P("v_or_b32 v17, 0x0c0c0000, v16")
    P("v_lshlrev_b32 v16, 16, v16"); P("v_or_b32 v16, 0x0c0c, v16")
    P("v_cndmask_b32 v16, v16, v17, vcc")
    P("v_bfe_u32 v18, v21, 1, 2")
    P("v_mov_b32 v17, 0x0c0c0c0c")
    fill = [f"v_mov_b32 v{ONE}, 1.0", f"v_mov_b32 v{DEN}, 0", f"v_mov_b32 v{LVL}, {l0}", f"v_mov_b32 v{PRG}, 1"]
    for q in range(4):
        P(f"v_cmp_eq_u32 vcc, {q}, v18"); P(f"v_mov_b32 v{PQ+q}, 0"); P(fill[q]); P(f"v_cndmask_b32 v{SEL[q]}, v17, v16, vcc", "v_perm selector" if q == 0 else None)
    P(f"v_mov_b32 v{CNEG}, {f2u(cneg):#x}", "-0.5 * d^-0.25")
    for r in range(4): P(f"v_mov_b32 v{ACC+r}, 0")
    P(f"s_mov_b32 s52, {f2u(c1):#x}", "d^-0.25 * log2(e)"); P(f"s_mov_b32 s53, {f2u(ism):#x}", "m^-0.5"); P(f"s_mov_b32 s54, {f2u(1e-6):#x}", "1e-6")
    P("s_mov_b32 s74, 0x07060302")
    P("s_lshr_b32 s75, s70, 4"); P(f"v_mov_b32 v{CA}, {CL}"); P(f"v_add_u32 v{PGA}, s75, v{CA}")
    for s_, c_ in S: I(s_, c_)
    if test == 2:
        I("s_mul_i32 s60, s2, 0x9E3779B1"); I("s_lshr_b32 s60, s60, 28")
        A("L_t2:"); I("s_sleep 40"); I("s_sub_u32 s60, s60, 1"); I("s_cbranch_scc0 L_t2")
    I("s_waitcnt vmcnt(8)")
    I("s_barrier")
    C("---- phi_q: the K-tile arithmetic on q in every column ----")
    for c in range(4): I(f"ds_read_b128 v[{OM+4*c}:{OM+4*c+3}], v{RA[0]} offset:{64*c}")
    for c in range(4): I(f"ds_read_b128 v[{KR+4*c}:{KR+4*c+3}], v{RA[1]} offset:{2048+64*c}")
    def proj():
        I(f"v_mov_b32 v{N0}, 0"); I(f"v_mov_b32 v{N1}, 0")
        for c in range(4):
            I(f"s_waitcnt lgkmcnt({3-c})")
            srcc = "0" if c == 0 else f"v[{X}:{X+3}]"
            I(f"v_mfma_f32_16x16x32_bf16 v[{X}:{X+3}], v[{OM+4*c}:{OM+4*c+3}], v[{KR+4*c}:{KR+4*c+3}], {srcc}")
            for j in range(4): I(f"v_dot2c_f32_bf16 v{N0+(j&1)}, v{KR+4*c+j}, v{KR+4*c+j}")
        I("s_nop 2")
        I(f"v_add_f32 v{N0}, v{N0}, v{N1}")
        I("s_nop 1")
        I(f"v_mfma_f32_16x16x4_f32 v[{X}:{X+3}], v{CNEG}, v{N0}, v[{X}:{X+3}]", "omega.x - 0.5 * d^-0.25 * |x|^2")
    proj()
    I("s_add_u32 s36, s12, s55"); I("s_addc_u32 s37, s13, 0"); I("s_movk_i32 s38, 256"); I("s_mov_b32 s39, s23", "out row of this head")
    I("s_lshl_b32 s56, s50, 10")
    I("s_add_u32 s44, s16, s56"); I("s_addc_u32 s45, s17, 0"); I("s_movk_i32 s46, 1024"); I("s_mov_b32 s47, s23", "hand-off slot of this head")
    I(f"v_mov_b32 v{T0}, s54")
    I(f"v_mul_f32 v{A0}, s52, v{X}"); I(f"v_mul_f32 v{A1}, s52, v{X+1}")
    I(f"v_exp_f32 v{A0}, v{A0}"); I(f"v_exp_f32 v{A1}, v{A1}")
    I("s_nop 0")
    I(f"v_fma_f32 v{A0}, v{A0}, s53, v{T0}"); I(f"v_fma_f32 v{A1}, v{A1}, s53, v{T0}", "phi_q[2g], phi_q[2g+1]")
    I(f"v_add_f32 v{BB}, v{A0}, v{A1}"); I(f"v_mul_f32 v{BB}, s54, v{BB}", "1e-6 term of phi_k")
    I(f"v_mul_f32 v{A0}, s53, v{A0}"); I(f"v_mul_f32 v{A1}, s53, v{A1}")
    nlab = [0]; so = [3,1,2]
    def wait(j):
        if j == 0:
            I("s_waitcnt vmcnt(4)", "tile i-2 has landed"); return
        nlab[0] += 1
        I(f"s_cmp_ge_u32 s80, {4*(so.index(j)+1)+neg}")
        I(f"s_cbranch_scc1 L_w{nlab[0]}")
        I("s_waitcnt vmcnt(4)")
        if j == 3:
            I(f"s_cmp_ge_u32 s80, {neg}")
            I(f"s_cbranch_scc1 L_w{nlab[0]}")
            I("s_waitcnt vmcnt(3)")
        A(f"L_w{nlab[0]}:")
    def top():
        I(f"v_add3_u32 v{PQ}, v{PQ}, v{PQ+1}, v{PQ+2}")
        I(f"v_mad_i32_i24 v{PQ+3}, v{PRG}, -4, v{PQ+3}")
        I(f"v_add3_u32 v{PQ}, v{PQ}, v{PQ+3}, {io}", "how far the siblings are ahead")
        I(f"v_mad_i32_i24 v{LVL}, v{PQ}, {iw}, v{LVL}")
        I(f"v_max_i32 v{LVL}, 0, v{LVL}")
        I(f"v_add_u32 v{PRG}, 1, v{PRG}")
        I(f"v_readfirstlane_b32 s80, v{LVL}")
        I(f"ds_write_b32 v{PGA}, v{PRG} offset:16")
        I(f"ds_read_b32 v{LVL}, v{CA}")
        I(f"ds_read_b128 v[{PQ}:{PQ+3}], v{CA} offset:16")
        I(f"s_or_b32 s48, s48, {(~tmask) & 0xffffffff:#x}"); I("s_add_u32 s48, s48, 1"); I(f"s_and_b32 s48, s48, {tmask:#x}", "next tile")
        I("s_addk_i32 s73, 0x1000"); I("s_and_b32 s73, s73, 0x3000"); I("s_or_b32 m0, s71, s73", "slot to fill"); I("s_xor_b32 s72, m0, 0x2000", "slot to read")
        I("s_lshr_b32 s81, s73, 12"); I("s_add_u32 s80, s80, s81", "depth level, dithered over four tiles")
    def k_read():
        for c in range(4): I(f"ds_read_b128 v[{KR+4*c}:{KR+4*c+3}], v{RA[c]}")
    def k_exp():
        I("s_nop 6")
        I(f"v_mul_f32 v{T0}, s52, v{X}"); I(f"v_mul_f32 v{T1}, s52, v{X+1}")
        I(f"v_exp_f32 v{T0}, v{T0}"); I(f"v_exp_f32 v{T1}, v{T1}")
        I("s_nop 0")
        I(f"v_fma_f32 v{T0}, v{A0}, v{T0}, v{BB}"); I(f"v_fma_f32 v{T0}, v{A1}, v{T1}, v{T0}")
        I(f"v_add_f32 v{DEN}, v{DEN}, v{T0}")
        I("s_nop 0")
        I(f"v_mfma_f32_16x16x4_f32 v[{W}:{W+3}], v{ONE}, v{T0}, 0", "w of column n")
    def k_pack():
        I("s_nop 6")
        I(f"v_and_b32 v{T0}, 0xffff0000, v{W}"); I(f"v_sub_f32 v{T0}, v{W}, v{T0}")
        I(f"v_perm_b32 v{T0}, v{W}, v{T0}, s74", "{bf16 hi, bf16 lo}")
        I("s_mov_b64 exec, 0xffff")
        I(f"ds_write_b32 v{PA}, v{T0}")
        I("s_mov_b64 exec, -1")
        I(f"v_add_u32 v{PA}, 64, v{PA}")
    C("---- phase 1: iteration i requests tile i and works on K tile i-2 ----")
    A("L_kloop:")
    top()
    I("s_cmp_lg_u32 s48, s22")
    I("s_cbranch_scc1 L_kgo")
    I("s_mov_b32 s48, 0", "K is all requested: go on with V"); I("s_mov_b64 s[20:21], s[24:25]")
    for c in range(4): I(f"v_mov_b32 v{VO[c]}, v{VOL}")
    A("L_kgo:")
    I(f"v_add_u32 v{RA[0]}, s72, v{RB}")
    for c in range(1,4): I(f"v_xor_b32 v{RA[c]}, {64*c}, v{RA[0]}")
    for j, f in enumerate((k_read, proj, k_exp, k_pack)):
        wait(j); ld(j); f()
    I("s_cmpk_lg_u32 s48, 0x4000")
    I("s_cbranch_scc1 L_kloop")
    def p_read():
        I(f"ds_read_b128 v[{W}:{W+3}], v{PA}", "weights of the next V tile")
        I(f"v_add_u32 v{PA}, 64, v{PA}")
    def perms(rs, w=True):
        if w: I("s_waitcnt lgkmcnt(0)")
        for r in rs:
            for q in range(4): I(f"v_perm_b32 v{OM+4*r+q}, v{W+r}, v{W+r}, v{SEL[q]}")
    C("---- between the phases: denominator of this wave, A operands of V tile 0, closing addresses ----")
    I(f"v_and_b32 v{T0}, 48, v0")
    I(f"v_add_u32 v{PA}, s59, v{T0}")
    p_read()
    I(f"v_add_f32 v{DEN}, v{DEN}, v{DEN} row_ror:8")
    I(f"v_and_b32 v{T0}, 15, v0"); I(f"v_lshl_add_u32 v{RA[1]}, v{T0}, 5, s59")
    I(f"v_add_f32 v{DEN}, v{DEN}, v{DEN} row_ror:4")
    I(f"v_and_b32 v{T0}, 16, v0"); I(f"v_add_u32 v{RA[1]}, v{T0}, v{RA[1]}")
    I(f"v_add_f32 v{DEN}, v{DEN}, v{DEN} row_ror:2")
    I(f"v_and_b32 v{T0}, 32, v0"); I(f"v_lshl_add_u32 v{RA[1]}, v{T0}, 4, v{RA[1]}")
    I(f"v_add_f32 v{DEN}, v{DEN}, v{DEN} row_ror:1")
    I(f"v_lshlrev_b32 v{A0}, 3, v0"); I(f"v_lshlrev_b32 v{A1}, 1, v0")
    I(f"v_mfma_f32_16x16x4_f32 v[{X}:{X+3}], v{ONE}, v{DEN}, 0")
    I(f"v_lshlrev_b32 v{RA[2]}, 2, v0"); I(f"v_add_u32 v{RA[2]}, {PL}, v{RA[2]}")
    I(f"v_subrev_u32 v{T0}, 32, v{PGA}"); I(f"v_subrev_u32 v{RA[3]}, 32, v{CA}")
    perms(range(4))
    I(f"ds_write_b32 v{T0}, v{X}")
    def mm(r): I(f"v_mfma_f32_16x16x32_bf16 v[{ACC}:{ACC+3}], v[{OM+4*r}:{OM+4*r+3}], v[{KR+4*r}:{KR+4*r+3}], v[{ACC}:{ACC+3}]")
    def rd(r): I(f"ds_read_b128 v[{KR+4*r}:{KR+4*r+3}], v{RA[0]} offset:{1024*r}")
    def v_mm():
        for r in range(4): rd(r)
        for r in range(4):
            I(f"s_waitcnt lgkmcnt({3-r})"); mm(r)
    C("---- phase 2 ----")
    A("L_vloop:")
    top()
    I(f"v_add_u32 v{RA[0]}, s72, v{L16}")
    for j, f in enumerate((v_mm, p_read, lambda: perms([0,1]), lambda: perms([2,3], False))):
        wait(j); ld(j); f()
    I(f"s_cmp_lg_u32 s48, {tmask & 0xfffff:#x}")
    I("s_cbranch_scc1 L_vloop")
    C("---- everything is requested: the last two tiles ----")
    I(f"v_xor_b32 v{RA[0]}, 0x3000, v{RA[0]}")
    I("s_waitcnt vmcnt(4)")
    for r in range(4): rd(r)
    I(f"ds_read_b128 v[{W}:{W+3}], v{PA}")
    for r in range(4):
        I(f"s_waitcnt lgkmcnt({4-r})"); mm(r)
    I(f"v_xor_b32 v{RA[0]}, 0x1000, v{RA[0]}")
    perms(range(4))
    I("s_waitcnt vmcnt(1)")
    for r in range(3): rd(r)
    for r in range(3):
        I(f"s_waitcnt lgkmcnt({2-r})"); mm(r)
    I("s_waitcnt vmcnt(0)")
    rd(3)
    I("s_waitcnt lgkmcnt(0)")
    mm(3)
    I("s_nop 6")
    I("s_cmpk_ge_u32 s70, 128")
    I(f"ds_write_b128 v{RA[1]}, v[{ACC}:{ACC+3}]")
    I("s_waitcnt lgkmcnt(0)")
    I("s_barrier", "the helper joins once it has seen the flag")
    I("s_cbranch_scc1 L_end")
    C("---- waves 0,1: one output element per lane ----")
    I(f"ds_read_b128 v[48:51], v{RA[3]}")
    for w in range(4): I(f"ds_read2st64_b32 v[{40+2*w}:{41+2*w}], v{RA[2]} offset0:{8*w} offset1:{8*w+2}")
    I("s_waitcnt lgkmcnt(2)")
    I("v_pk_add_f32 v[48:49], v[48:49], v[50:51]"); I("v_pk_add_f32 v[40:41], v[40:41], v[42:43]")
    I("v_add_f32 v53, v48, v49")
    I("s_waitcnt lgkmcnt(0)")
    I("v_pk_add_f32 v[44:45], v[44:45], v[46:47]")
    I("v_and_b32 v43, 0x7fffffff, v53", "sign bit set = empty slot")
    I("v_pk_add_f32 v[40:41], v[40:41], v[44:45]")
    I("v_add_f32 v42, v40, v41")
    I(f"buffer_atomic_swap_x2 v[42:43], v{A0}, s[44:47], 0 offen sc0")
    I("v_add_f32 v52, v40, v41")
    I("s_waitcnt vmcnt(0)")
    I("v_cmp_le_i32 vcc, 0, v43")
    I("v_pk_add_f32 v[42:43], v[42:43], v[52:53]")
    I("s_and_saveexec_b64 s[56:57], vcc")
    I("s_cbranch_execz L_end", "first of the two halves: the partner finishes")
    I("v_add_f32 v43, s54, v43"); I("v_rcp_f32 v44, v43"); I("s_nop 0")
    I("v_mul_f32 v42, v42, v44")
    I("v_cvt_pk_bf16_f32 v42, v42, v42")
    I(f"buffer_store_short v42, v{A1}, s[36:39], 0 offen")
    A("L_end:")
    I("s_endpgm")
    C("---- helper: control words, flag, rank checkpoints ----")
    A("L_helper:")
    I(f"v_mov_b32 v1, {CL}"); I(f"v_mov_b32 v2, {l0}")
    for r in range(4): I(f"v_mov_b32 v{4+r}, 1")
    I("ds_write_b32 v1, v2"); I("ds_write_b128 v1, v[4:7] offset:16")
    I("s_waitcnt lgkmcnt(0)")
    I("s_barrier", "opening barrier")
    I("s_cmp_lg_u32 s19, 0")
    I("s_cbranch_scc1 L_h2")
    I("s_lshl_b32 s57, 1, s50")
    I("s_waitcnt vmcnt(0)")
    I("s_atomic_or s57, s[14:15], 0", "this workgroup's share of d_ws is reset")
    A("L_h2:")
    I("s_mov_b32 s26, 0")
    I("s_bfe_u32 s52, s2, 0x30003"); I("s_lshl_b32 s52, s52, 8"); I(f"s_add_u32 s52, s52, {CB:#x}", "counter of this group of 32 workgroups")
    I("s_lshr_b32 s51, s2, 2"); I("s_xor_b32 s51, s51, s2"); I("s_bfe_u32 s51, s51, 0x30003")
    I("s_and_b32 s53, s2, 1"); I("s_xor_b32 s51, s51, s53"); I("s_lshl_b32 s51, s51, 8", "two groupings, taken in turn")
    for i in range(4): I(f"s_mov_b32 s{80+i}, {sum(lvn[8*i+j] << (4*j) for j in range(8)):#x}", "depth level by rank, 4 bits each" if i == 0 else None)
    cm = sum(1 << x for x in cps)
    I(f"s_mov_b32 s84, {cm & 0xffffffff:#x}", "checkpoint iterations"); I(f"s_mov_b32 s85, {cm >> 32:#x}")
    A("L_next:")
    I("s_ff1_i32_b64 s53, s[84:85]")
    I("s_cmp_lt_i32 s53, 0")
    I("s_cbranch_scc1 L_hend")
    I("s_bitset0_b64 s[84:85], s53")
    I("s_lshl_b32 s53, s53, 2")
    A("L_poll:")
    I("ds_read_b128 v[4:7], v1 offset:16", "progress of the four streaming waves"); I("s_waitcnt lgkmcnt(0)")
    I("v_add_u32 v4, v4, v5"); I("v_add3_u32 v4, v4, v6, v7"); I("s_nop 0"); I("v_readfirstlane_b32 s55, v4"); I("s_nop 1")
    I("s_cmp_lt_u32 s55, s53"); I("s_cbranch_scc1 L_poll")
    I("s_cmpk_eq_u32 s26, 0xffff"); I("s_cbranch_scc1 L_rank")
    I("s_load_dword s26, s[14:15], 0", "nothing in d_ws is used before all 16 bits are up")
    A("L_flag:")
    I("s_waitcnt lgkmcnt(0)")
    I("s_and_b32 s26, s26, 0xffff"); I("s_cmpk_eq_u32 s26, 0xffff"); I("s_cbranch_scc1 L_rank")
    I("s_sleep 16", "rare path: back off between polls of the flag word"); I("s_mov_b32 s26, 0"); I("s_atomic_or s26, s[14:15], 0 glc", "not yet: read it at the memory side"); I("s_branch L_flag")
    A("L_rank:")
    I("s_mov_b32 s55, 1"); I("s_atomic_add s55, s[16:17], s52 glc")
    I("s_waitcnt lgkmcnt(0)")
    I("s_addk_i32 s52, 2048"); I("s_xor_b32 s52, s52, s51")
    I("s_add_u32 s55, s55, 1", "arrival rank")
    I("s_bitcmp1_b32 s55, 4"); I("s_cselect_b64 s[58:59], s[82:83], s[80:81]")
    I("s_lshl_b32 s55, s55, 2"); I("s_lshr_b64 s[58:59], s[58:59], s55"); I("s_and_b32 s58, s58, 15")
    I("v_mov_b32 v2, s58"); I("ds_write_b32 v1, v2")
    I("s_branch L_next")
    A("L_hend:")
    I("s_barrier", "closing barrier of the workgroup")
    I("s_endpgm")
    A('.section .rodata,"a"'); A(".p2align 6"); A(f".amdhsa_kernel {NAME}")
    A("  .amdhsa_next_free_vgpr 80"); A("  .amdhsa_next_free_sgpr 88"); A("  .amdhsa_accum_offset 80")
    A("  .amdhsa_group_segment_fixed_size 0"); A("  .amdhsa_kernarg_size 56"); A("  .amdhsa_user_sgpr_count 2")
    A("  .amdhsa_user_sgpr_kernarg_segment_ptr 1"); A("  .amdhsa_system_sgpr_workgroup_id_x 1")
    A("  .amdhsa_float_denorm_mode_32 3")
    A(".end_amdhsa_kernel")
    return "\n".join(L)+"\n"
if __name__ == "__main__":
    open(sys.argv[1], "w").write(gen(test=int(sys.argv[2]) if len(sys.argv) > 2 else 0))
```

```python
import sys, struct, math, os
def f2u(x): return struct.unpack('<I', struct.pack('<f', x))[0]
HEADER = """; Kernarg layout for this problem (56 bytes, ptrs only, base s[0:1]):
;   offset  32: d_out     shape=(4, 32, 1, 128) dtype=bfloat16 (2 bytes/elem)
"""
NAME = "standalone__linear_kernel_rfa__decode_kernel"

def gen(tm="tctttt", flags="nt", stamps=0, fixed=0, tl=0, tag=0, ib=8, slp=3, ts=0, lv='0011223344556677888999aaabbbccdf', l0=6,
        cps='9.18.27.36.44.51.56.60', so='312', neg=4, pst=0, wv=0, iw=2, io=2, enc=-1, em='s', eo=0, dg=0, nr=0, hop2=0, qfirst=1, peel=2, qa=1, ack=1, gb=3, cst=None, lv2=None, sw=99, fe=1, cnt=0, loc=0, cc=0, bl=4, rb=0, al=12, hl=2):
    if dg: tl = 1
    if enc >= 0: fixed = 80
    if enc >= 70: pst = 2
    L = []; A = L.append
    def I(s): A("    "+s)
    def C(s): A("    ; "+s)
    so = [int(c) for c in str(so)]
    lv = str(lv); lv = "".join(ch*(32//len(lv)) for ch in lv); lvn = [int(ch, 16) for ch in lv]
    cpl = [int(x) for x in str(cps).split('.')]; assert len(cpl) <= 24
    if cst is None: cst = 256 << gb
    creg = -(-(len(cpl)*cst) // 0x4000)*0x4000
    tpos = [14+i for i,ch in enumerate(tm) if ch == 't']; mem_p = 14+tm.index('c')
    tmask = sum(1 << p for p in tpos) | (1 << 20); t1 = 1 << tpos[0]
    CB = 0x20000
    PL = 65536; OML = PL+8192; QL = OML+2048; DL = QL+2048; CL = DL+32
    lds = DL+96
    scale = 128**-0.25
    c1 = scale*math.log2(math.e); cneg = -0.5*scale; ism = 8**-0.5
    A(HEADER.rstrip())
    A(f"; @launch grid=(256,1,1) block=(320,1,1) lds={lds}")
    A('.amdgcn_target "amdgcn-amd-amdhsa--gfx950"')
    A(".text"); A(f".globl {NAME}"); (A(f".p2align {al}") if al else None); A(".p2align 8"); A(f".type {NAME},@function"); A(f"{NAME}:")
    VO = [1,2,3,4]; VOL = 5; RA = [6,7,8,9]; SEL = [10,11,12,13]; CNEG, ONE = 14, 15
    ACC, X, W = 16, 20, 24
    RB, PA, A0, A1, BB, DEN, N0, N1, T0, T1, PAT, L16 = 28, 29, 30, 31, 32, 33, 34, 35, 36, 37, 38, 39
    OM = 40; KR = 56; CA, PRG, PGA = 72, 73, 74; PQ = 76; TLV, TLL = 80, 81
    nv = 116 if peel == 3 else (82 if tl else 80)
    I("s_load_dwordx8 s[4:11], s[0:1], 0        ; q, k, v, omega")
    I("s_load_dwordx4 s[12:15], s[0:1], 32")
    I("s_load_dwordx2 s[16:17], s[0:1], 48      ; ws")
    if stamps or fixed or cnt: I("s_memrealtime s[60:61]")
    I("v_readfirstlane_b32 s70, v0              ; 64 * wave")
    I("s_cmpk_ge_u32 s2, 256")
    I("s_cbranch_scc1 L_end")
    I(f"v_and_b32 v{L16}, 63, v0")
    if loc: I("s_and_b32 s50, s2, 3"); I("s_lshr_b32 s18, s2, 3"); I("s_lshl2_add_u32 s50, s18, s50")
    else: I("s_and_b32 s50, s2, 7"); I("s_lshr_b32 s18, s2, 4"); I("s_lshl3_add_u32 s50, s18, s50            ; head")
    I(f"v_lshlrev_b32 v{L16}, 4, v{L16}              ; lane * 16")
    I("s_mov_b32 s23, 0x20000")
    I("s_sub_u32 s70, s70, 64")
    I("s_cbranch_scc0 L_stream")
    C("---- helper: 16 workgroups first reset the hand-off slots and the rank counters ----")
    I(f"s_and_b32 s19, s2, {0xe4 if loc else 0xe8:#x}")
    I("s_cbranch_scc1 L_helper")
    I("s_lshl_b32 s18, s50, 10")
    I(f"s_mov_b32 s22, {CB+creg:#x}")
    for r in range(4): I(f"v_mov_b32 v{W+r}, -1")
    I("s_waitcnt lgkmcnt(0)")
    I("s_mov_b64 s[20:21], s[16:17]")
    A("L_init:")
    I(f"buffer_store_dwordx4 v[{W}:{W+3}], v{L16}, s[20:23], s18 offen sc0 sc1")
    I("s_addk_i32 s18, 0x4000")
    I("s_cmp_lt_u32 s18, s22")
    I("s_cbranch_scc1 L_init")
    I("s_branch L_helper")
    A("L_stream:")
    I("s_setprio 3")
    if loc:
        I("s_lshl_b32 s3, s2, 1"); I("s_xor_b32 s3, s3, s2"); I("s_and_b32 s3, s3, 4"); I("s_lshl_b32 s3, s3, 11")
        if cc: I("s_xor_b32 s3, s3, 0x2000")
        I("s_and_b32 s18, s70, 64"); I("s_lshl_b32 s18, s18, 6"); I("s_or_b32 s3, s3, s18")
        I("s_and_b32 s18, s70, 128"); I(f"s_lshl_b32 s18, s18, {mem_p-7}"); I("s_or_b32 s3, s3, s18")
        if loc == 2: I("s_cmpk_eq_u32 s70, 192"); I("s_cselect_b32 s18, 0x2000, 0"); I("s_xor_b32 s3, s3, s18")
    else:
        I("s_and_b32 s3, s2, 8"); I(f"s_lshl_b32 s3, s3, {mem_p-3}               ; member bit")
        I("s_lshl_b32 s18, s70, 6"); I("s_or_b32 s3, s3, s18                     ; + wave * 4096")
    I(f"v_add_u32 v{VOL}, s3, v{L16}")
    I(f"v_and_b32 v23, 48, v0"); I("v_lshlrev_b32 v23, 2, v23                ; g * 64")
    I(f"v_xor_b32 v{VO[0]}, v{VOL}, v23")
    for c in range(1,4): I(f"v_xor_b32 v{VO[c]}, {16*c}, v{VO[0]}")
    I("s_lshl_b32 s71, s70, 8                   ; ring base of this wave")
    I("s_lshl_b32 s19, s70, 4")
    I(f"s_add_u32 {'m0' if qfirst else 's86'}, s19, {OML}")
    if not qfirst: I("s_mov_b32 m0, s71")
    I("s_mov_b32 s31, s23"); I("s_movk_i32 s30, 256")
    I("s_lshl_b32 s18, s50, 20"); I("s_lshl_b32 s55, s50, 8")
    I("s_mov_b32 s22, 0x100000")
    I(f"s_mov_b32 s48, {t1:#x}"); I("s_movk_i32 s73, 0x1000")
    I("s_cmpk_lt_u32 s70, 128")
    I("s_cselect_b32 s19, s19, s55"); I("s_cselect_b32 s30, 1024, s30")
    I("s_waitcnt lgkmcnt(0)")
    def ld(c, so_="s48"): I(f"buffer_load_dwordx4 v{VO[c]}, s[20:23], {so_} offen offset:{1024*c} {flags} lds")
    def qld():
        I("s_cselect_b64 s[28:29], s[10:11], s[4:5]")
        I("s_add_u32 s28, s28, s19"); I("s_addc_u32 s29, s29, 0")
    if qfirst:
        qld()
        I(f"buffer_load_dwordx4 v{L16}, s[28:31], 0 offen lds      ; omega halves (waves 0,1), q (waves 2,3)")
        if pst: I("s_memrealtime s[88:89]")
        I("s_mov_b32 m0, s71")
        I("s_add_u32 s20, s6, s18"); I("s_addc_u32 s21, s7, 0")
        for c in range(4): ld(c, "0")
    else:
        qld()
        I("s_add_u32 s20, s6, s18"); I("s_addc_u32 s21, s7, 0")
        for c in range(qa): ld(c, "0")
        if pst: I("s_memrealtime s[88:89]")
        I("s_mov_b32 m0, s86"); I("s_nop 0")
        I(f"buffer_load_dwordx4 v{L16}, s[28:31], 0 offen lds")
        I("s_mov_b32 m0, s71"); I("s_nop 0")
        for c in range(qa,4): ld(c, "0")
    I("s_or_b32 m0, s71, s73")
    I("s_add_u32 s24, s8, s18")
    for c in range(ib-4): ld(c)
    if pst == 2: I("s_memrealtime s[90:91]")
    I("s_addc_u32 s25, s9, 0")
    A("L_burst_end:")
    I("v_subrev_u32 v0, 64, v0")
    I("v_and_b32 v21, 15, v0                    ; n"); I("v_bfe_u32 v22, v0, 4, 2                  ; g")
    I("v_and_b32 v16, 3, v21"); I("v_lshlrev_b32 v16, 10, v16")
    I("v_lshrrev_b32 v17, 2, v21"); I("v_lshl_add_u32 v16, v17, 8, v16          ; row(n) * 256")
    I("v_xor_b32 v18, v22, v21"); I(f"v_lshl_add_u32 v{RB}, v18, 4, v16")
    I("v_lshlrev_b32 v17, 1, v17"); I("v_and_b32 v18, 1, v21"); I("v_add_u32 v17, v17, v18")
    def hblock():
        A("L_helper:")
        I(f"v_mov_b32 v1, {CL}"); I(f"v_mov_b32 v2, {l0}")
        for r in range(4): I(f"v_mov_b32 v{4+r}, 1")
        I("ds_write_b32 v1, v2"); I("ds_write_b128 v1, v[4:7] offset:16")
        I("s_waitcnt lgkmcnt(0)")
        I("s_barrier")
        I("s_branch L_control")
    if not hl:
        I("s_branch L_cont")
        A(f".fill (512 - (. - {NAME}))/4, 4, 0xbf800000")
        hblock()
    A("L_cont:")
    I(f"s_mov_b32 s58, {OML}")
    I(f"v_lshl_add_u32 v{RA[1]}, v22, 4, s58"); I(f"v_lshl_add_u32 v{RA[0]}, v17, 8, v{RA[1]}")
    I("s_lshl_b32 s59, s70, 5"); I(f"s_add_u32 s59, s59, {PL}")
    I(f"v_lshl_add_u32 v{PA}, v21, 2, s59")
    I("v_cmp_gt_u32 vcc, 8, v21")
    I("v_mov_b32 v16, 0x0100"); I("v_mov_b32 v17, 0x0302")
    I("v_cndmask_b32 v16, v16, v17, vcc")
    I("v_cmp_eq_u32 vcc, 0, v18")
    I("v_or_b32 v17, 0x0c0c0000, v16")
    I("v_lshlrev_b32 v16, 16, v16"); I("v_or_b32 v16, 0x0c0c, v16")
    I("v_cndmask_b32 v16, v16, v17, vcc")
    I("v_bfe_u32 v18, v21, 1, 2")
    I("v_mov_b32 v17, 0x0c0c0c0c")
    for q in range(4):
        I(f"v_cmp_eq_u32 vcc, {q}, v18"); I(f"v_mov_b32 v{PQ+q}, 0"); I("s_nop 0"); I(f"v_cndmask_b32 v{SEL[q]}, v17, v16, vcc")
    I(f"v_mov_b32 v{CNEG}, {f2u(cneg):#x}")
    I(f"v_mov_b32 v{ONE}, 1.0")
    I(f"v_mov_b32 v{DEN}, 0")
    for r in range(4): I(f"v_mov_b32 v{ACC+r}, 0")
    I(f"s_mov_b32 s52, {f2u(c1):#x}"); I(f"s_mov_b32 s53, {f2u(ism):#x}"); I(f"s_mov_b32 s54, {f2u(1e-6):#x}")
    I("s_mov_b32 s74, 0x07060302")
    I(f"v_mov_b32 v{PAT}, {l0}"); I(f"v_mov_b32 v{PRG}, 1")
    if rb:
        I("s_getreg_b32 s79, hwreg(HW_REG_XCC_ID, 2, 1)"); I("s_lshr_b32 s75, s70, 7"); I("s_xor_b32 s79, s79, s75"); I("s_bfe_u32 s75, s50, 0x10001"); I("s_xor_b32 s79, s79, s75")
        I(f"s_cmp_eq_u32 s79, {cc}"); I(f"s_cselect_b32 s79, {io+rb}, {io-rb}")
    I("s_lshr_b32 s75, s70, 4"); I(f"v_mov_b32 v{CA}, {CL}"); I(f"v_add_u32 v{PGA}, s75, v{CA}")
    if tl:
        I(f"v_and_b32 v{TLL}, 63, v0"); I(f"v_mov_b32 v{TLV}, 0"); I("s_mov_b32 s78, 0")
    if pst == 1: I("s_memrealtime s[90:91]")
    I(f"s_waitcnt vmcnt({ib if qfirst else ib-qa})")
    if pst: I("s_memrealtime s[92:93]")
    I("s_barrier")
    if pst: I("s_memrealtime s[94:95]"); I("s_waitcnt lgkmcnt(0)")
    for c in range(4): I(f"ds_read_b128 v[{OM+4*c}:{OM+4*c+3}], v{RA[0]} offset:{64*c}")
    for c in range(4): I(f"ds_read_b128 v[{KR+4*c}:{KR+4*c+3}], v{RA[1]} offset:{2048+64*c}")
    def proj():
        I(f"v_mov_b32 v{N0}, 0"); I(f"v_mov_b32 v{N1}, 0")
        for c in range(4):
            I(f"s_waitcnt lgkmcnt({3-c})")
            srcc = "0" if c == 0 else f"v[{X}:{X+3}]"
            I(f"v_mfma_f32_16x16x32_bf16 v[{X}:{X+3}], v[{OM+4*c}:{OM+4*c+3}], v[{KR+4*c}:{KR+4*c+3}], {srcc}")
            for j in range(4): I(f"v_dot2c_f32_bf16 v{N0+(j&1)}, v{KR+4*c+j}, v{KR+4*c+j}")
        I("s_nop 2")
        I(f"v_add_f32 v{N0}, v{N0}, v{N1}")
        I("s_nop 1")
        I(f"v_mfma_f32_16x16x4_f32 v[{X}:{X+3}], v{CNEG}, v{N0}, v[{X}:{X+3}]")
    proj()
    I("s_add_u32 s36, s12, s55"); I("s_addc_u32 s37, s13, 0"); I("s_movk_i32 s38, 256"); I("s_mov_b32 s39, s23")
    I("s_lshl_b32 s56, s50, 10")
    I("s_add_u32 s44, s16, s56"); I("s_addc_u32 s45, s17, 0"); I("s_movk_i32 s46, 1024"); I("s_mov_b32 s47, s23")
    I(f"v_mov_b32 v{T0}, s54")
    I(f"v_mul_f32 v{A0}, s52, v{X}"); I(f"v_mul_f32 v{A1}, s52, v{X+1}")
    I(f"v_exp_f32 v{A0}, v{A0}"); I(f"v_exp_f32 v{A1}, v{A1}")
    I("s_nop 0")
    I(f"v_fma_f32 v{A0}, v{A0}, s53, v{T0}"); I(f"v_fma_f32 v{A1}, v{A1}, s53, v{T0}")
    I(f"v_add_f32 v{BB}, v{A0}, v{A1}"); I(f"v_mul_f32 v{BB}, s54, v{BB}")
    I(f"v_mul_f32 v{A0}, s53, v{A0}"); I(f"v_mul_f32 v{A1}, s53, v{A1}")
    for c in range(ib-4, 4):
        I("s_waitcnt vmcnt(4)"); ld(c)
    nlab = [0]
    def wait(j):
        if j in so:
            nlab[0] += 1
            I(f"s_cmp_ge_u32 s80, {4*(so.index(j)+1)+neg}")
            I(f"s_cbranch_scc1 L_p{nlab[0]}")
            I(f"s_waitcnt vmcnt({bl})")
            if neg and so.index(j) == 0:
                I(f"s_cmp_ge_u32 s80, {neg}")
                I(f"s_cbranch_scc1 L_p{nlab[0]}")
                I(f"s_waitcnt vmcnt({bl-1})")
            A(f"L_p{nlab[0]}:")
        else: I(f"s_waitcnt vmcnt({bl})")
    def top():
        if tl: I("s_memrealtime s[76:77]")
        if 0 <= enc < 64:
            nlab[0] += 1
            I("s_add_u32 s87, s87, 1"); I(f"s_cmp_lg_u32 s87, {enc+1}"); I(f"s_cbranch_scc1 L_e{nlab[0]}")
            I("s_memrealtime s[98:99]"); I("s_waitcnt lgkmcnt(0)"); A(f"L_e{nlab[0]}:")
        I(f"v_add3_u32 v{PQ}, v{PQ}, v{PQ+1}, v{PQ+2}")
        I(f"v_mad_i32_i24 v{PQ+3}, v{PRG}, -4, v{PQ+3}")
        I(f"v_add3_u32 v{PQ}, v{PQ}, v{PQ+3}, {'s79' if rb else io}")
        I(f"v_mad_i32_i24 v{PAT}, v{PQ}, {iw}, v{PAT}")
        I(f"v_max_i32 v{PAT}, 0, v{PAT}")
        I(f"v_add_u32 v{PRG}, 1, v{PRG}")
        I(f"v_readfirstlane_b32 s80, v{PAT}")
        I(f"ds_write_b32 v{PGA}, v{PRG} offset:16")
        I(f"ds_read_b32 v{PAT}, v{CA}")
        I(f"ds_read_b128 v[{PQ}:{PQ+3}], v{CA} offset:16")
        I(f"s_or_b32 s48, s48, {(~tmask) & 0xffffffff:#x}"); I("s_add_u32 s48, s48, 1"); I(f"s_and_b32 s48, s48, {tmask:#x}")
        I("s_addk_i32 s73, 0x1000"); I("s_and_b32 s73, s73, 0x3000"); I("s_or_b32 m0, s71, s73"); I("s_xor_b32 s72, m0, 0x2000")
        I("s_lshr_b32 s81, s73, 12"); I("s_add_u32 s80, s80, s81")
        if tl:
            I("s_waitcnt lgkmcnt(0)"); I("s_sub_u32 s76, s76, s60"); I(f"v_mov_b32 v{T1}, s76"); I(f"v_cmp_eq_u32 vcc, s78, v{TLL}"); I("s_add_u32 s78, s78, 1"); I("s_nop 0")
            I(f"v_cndmask_b32 v{TLV}, v{TLV}, v{T1}, vcc")
    def k_read():
        for c in range(4): I(f"ds_read_b128 v[{KR+4*c}:{KR+4*c+3}], v{RA[c]}")
    def k_exp():
        I("s_nop 6")
        I(f"v_mul_f32 v{T0}, s52, v{X}"); I(f"v_mul_f32 v{T1}, s52, v{X+1}")
        I(f"v_exp_f32 v{T0}, v{T0}"); I(f"v_exp_f32 v{T1}, v{T1}")
        I("s_nop 0")
        I(f"v_fma_f32 v{T0}, v{A0}, v{T0}, v{BB}"); I(f"v_fma_f32 v{T0}, v{A1}, v{T1}, v{T0}")
        I(f"v_add_f32 v{DEN}, v{DEN}, v{T0}")
        I("s_nop 0")
        I(f"v_mfma_f32_16x16x4_f32 v[{W}:{W+3}], v{ONE}, v{T0}, 0")
    def k_pack():
        I("s_nop 6")
        I(f"v_and_b32 v{T0}, 0xffff0000, v{W}"); I(f"v_sub_f32 v{T0}, v{W}, v{T0}")
        I(f"v_perm_b32 v{T0}, v{W}, v{T0}, s74")
        I("s_mov_b64 exec, 0xffff")
        I(f"ds_write_b32 v{PA}, v{T0}")
        I("s_mov_b64 exec, -1")
        I(f"v_add_u32 v{PA}, 64, v{PA}")
    assert sorted(so) == [1,2,3]
    if enc >= 0: I("s_mov_b32 s87, 0")
    A("L_kloop:")
    top()
    I("s_cmp_lg_u32 s48, s22")
    I("s_cbranch_scc1 L_kgo")
    if hl == 1:
        I("s_branch L_sw"); hblock(); A("L_sw:")
    I("s_mov_b32 s48, 0"); I("s_mov_b64 s[20:21], s[24:25]")
    for c in range(4): I(f"v_mov_b32 v{VO[c]}, v{VOL}")
    A("L_kgo:")
    I(f"v_add_u32 v{RA[0]}, s72, v{RB}")
    for c in range(1,4): I(f"v_xor_b32 v{RA[c]}, {64*c}, v{RA[0]}")
    for j, f in enumerate((k_read, proj, k_exp, k_pack)):
        wait(j); ld(j); f()
    I(f"s_cmp_lg_u32 s48, {t1:#x}")
    I("s_cbranch_scc1 L_kloop")
    def p_read():
        I(f"ds_read_b128 v[{W}:{W+3}], v{PA}")
        I(f"v_add_u32 v{PA}, 64, v{PA}")
    def perms(rs, w=True):
        if w: I("s_waitcnt lgkmcnt(0)")
        for r in rs:
            for q in range(4): I(f"v_perm_b32 v{OM+4*r+q}, v{W+r}, v{W+r}, v{SEL[q]}")
    A("L_switch:")
    I(f"v_and_b32 v{T0}, 48, v0")
    I(f"v_add_u32 v{PA}, s59, v{T0}")
    p_read()
    I(f"v_add_f32 v{DEN}, v{DEN}, v{DEN} row_ror:8")
    I(f"v_and_b32 v{T0}, 15, v0"); I(f"v_lshl_add_u32 v{RA[1]}, v{T0}, 5, s59")
    I(f"v_add_f32 v{DEN}, v{DEN}, v{DEN} row_ror:4")
    I(f"v_and_b32 v{T0}, 16, v0"); I(f"v_add_u32 v{RA[1]}, v{T0}, v{RA[1]}")
    I(f"v_add_f32 v{DEN}, v{DEN}, v{DEN} row_ror:2")
    I(f"v_and_b32 v{T0}, 32, v0"); I(f"v_lshl_add_u32 v{RA[1]}, v{T0}, 4, v{RA[1]}")
    I(f"v_add_f32 v{DEN}, v{DEN}, v{DEN} row_ror:1")
    I(f"v_lshlrev_b32 v{A0}, 3, v0"); I(f"v_lshlrev_b32 v{A1}, 1, v0")
    I(f"v_mfma_f32_16x16x4_f32 v[{X}:{X+3}], v{ONE}, v{DEN}, 0")
    I(f"v_lshlrev_b32 v{RA[2]}, 2, v0"); I(f"v_add_u32 v{RA[2]}, {PL}, v{RA[2]}")
    I(f"v_subrev_u32 v{T0}, 32, v{PGA}"); I(f"v_subrev_u32 v{RA[3]}, 32, v{CA}")
    perms(range(4))
    I(f"ds_write_b32 v{T0}, v{X}")
    def v_mm():
        for r in range(4): I(f"ds_read_b128 v[{KR+4*r}:{KR+4*r+3}], v{RA[0]} offset:{1024*r}")
        for r in range(4):
            I(f"s_waitcnt lgkmcnt({3-r})")
            I(f"v_mfma_f32_16x16x32_bf16 v[{ACC}:{ACC+3}], v[{OM+4*r}:{OM+4*r+3}], v[{KR+4*r}:{KR+4*r+3}], v[{ACC}:{ACC+3}]")
        if not peel:
            I(f"s_cmp_eq_u32 s48, {0x100000+t1:#x}")
            I("s_cbranch_scc1 L_done")
    A("L_vloop:")
    top()
    I(f"v_add_u32 v{RA[0]}, s72, v{L16}")
    for j, f in enumerate((v_mm, p_read, lambda: perms([0,1]), lambda: perms([2,3], False))):
        wait(j); ld(j); f()
    if not peel:
        I("s_branch L_vloop")
    elif peel == 3:
        A2, K2 = 84, 100
        def mm(r, a=OM, k=KR): I(f"v_mfma_f32_16x16x32_bf16 v[{ACC}:{ACC+3}], v[{a+4*r}:{a+4*r+3}], v[{k+4*r}:{k+4*r+3}], v[{ACC}:{ACC+3}]")
        def rd(r, k=KR, o=0): I(f"ds_read_b128 v[{k+4*r}:{k+4*r+3}], v{RA[0]} offset:{o+1024*r}")
        I(f"s_cmp_lg_u32 s48, {tmask & 0xfffff:#x}")
        I("s_cbranch_scc1 L_vloop")
        I(f"ds_read_b128 v[{W}:{W+3}], v{PA}")
        I(f"v_xor_b32 v{RA[0]}, 0x3000, v{RA[0]}")
        I("s_waitcnt lgkmcnt(0)")
        for r in range(4):
            for q in range(4): I(f"v_perm_b32 v{A2+4*r+q}, v{W+r}, v{W+r}, v{SEL[q]}")
        I("s_waitcnt vmcnt(4)")
        for r in range(4): rd(r)
        I("s_waitcnt vmcnt(1)")
        for r in range(3): rd(r, K2, 4096)
        for r in range(4):
            I(f"s_waitcnt lgkmcnt({6-r})"); mm(r)
        I("s_waitcnt vmcnt(0)")
        rd(3, K2, 4096)
        for r in range(4):
            I(f"s_waitcnt lgkmcnt({3-r})"); mm(r, A2, K2)
        I("s_nop 1")
    elif peel == 2:
        def mm(r): I(f"v_mfma_f32_16x16x32_bf16 v[{ACC}:{ACC+3}], v[{OM+4*r}:{OM+4*r+3}], v[{KR+4*r}:{KR+4*r+3}], v[{ACC}:{ACC+3}]")
        def rd(r): I(f"ds_read_b128 v[{KR+4*r}:{KR+4*r+3}], v{RA[0]} offset:{1024*r}")
        I(f"s_cmp_lg_u32 s48, {tmask & 0xfffff:#x}")
        I("s_cbranch_scc1 L_vloop")
        I(f"v_xor_b32 v{RA[0]}, 0x3000, v{RA[0]}")
        I("s_waitcnt vmcnt(4)")
        for r in range(4): rd(r)
        I(f"ds_read_b128 v[{W}:{W+3}], v{PA}")
        for r in range(4):
            I(f"s_waitcnt lgkmcnt({4-r})"); mm(r)
        I(f"v_xor_b32 v{RA[0]}, 0x1000, v{RA[0]}")
        perms(range(4))
        I("s_waitcnt vmcnt(1)")
        for r in range(3): rd(r)
        for r in range(3):
            I(f"s_waitcnt lgkmcnt({2-r})"); mm(r)
        I("s_waitcnt vmcnt(0)")
        rd(3)
        I("s_waitcnt lgkmcnt(0)")
        mm(3)
        I("s_nop 1")
    else:
        I("s_cmp_lg_u32 s48, s22")
        I("s_cbranch_scc1 L_vloop")
        I(f"v_xor_b32 v{RA[0]}, 0x1000, v{RA[0]}")
        I("s_waitcnt vmcnt(5)")
        for r in range(3): I(f"ds_read_b128 v[{KR+4*r}:{KR+4*r+3}], v{RA[0]} offset:{1024*r}")
        for r in range(3):
            I(f"s_waitcnt lgkmcnt({2-r})")
            I(f"v_mfma_f32_16x16x32_bf16 v[{ACC}:{ACC+3}], v[{OM+4*r}:{OM+4*r+3}], v[{KR+4*r}:{KR+4*r+3}], v[{ACC}:{ACC+3}]")
        I("s_waitcnt vmcnt(4)")
        I(f"ds_read_b128 v[{KR+12}:{KR+15}], v{RA[0]} offset:3072")
        I("s_waitcnt lgkmcnt(0)")
        I(f"v_mfma_f32_16x16x32_bf16 v[{ACC}:{ACC+3}], v[{OM+12}:{OM+15}], v[{KR+12}:{KR+15}], v[{ACC}:{ACC+3}]")
        I("s_nop 1")
    A("L_done:")
    if stamps: I("s_memrealtime s[62:63]")
    if enc == 64: I("s_memrealtime s[98:99]")
    if wv:
        I("s_waitcnt lgkmcnt(0)"); I(f"v_mov_b32 v{T1}, s62"); I(f"ds_write_b32 v{PGA}, v{T1} offset:32")
    if ts: I("s_memtime s[88:89]")
    I("s_nop 4")
    I("s_cmpk_ge_u32 s70, 128")
    I(f"ds_write_b128 v{RA[1]}, v[{ACC}:{ACC+3}]")
    I("s_waitcnt lgkmcnt(0)")
    I("s_barrier")
    I("s_cbranch_scc1 L_end")
    if ts: I("s_memtime s[90:91]")
    I(f"ds_read_b128 v[48:51], v{RA[3]}")
    for w in range(4): I(f"ds_read2st64_b32 v[{40+2*w}:{41+2*w}], v{RA[2]} offset0:{8*w} offset1:{8*w+2}")
    I("s_waitcnt lgkmcnt(2)" if not ts else "s_waitcnt lgkmcnt(0)")
    I("v_pk_add_f32 v[48:49], v[48:49], v[50:51]"); I("v_pk_add_f32 v[40:41], v[40:41], v[42:43]")
    I("v_add_f32 v53, v48, v49")
    I("s_waitcnt lgkmcnt(0)")
    I("v_pk_add_f32 v[44:45], v[44:45], v[46:47]")
    I("v_and_b32 v43, 0x7fffffff, v53")
    I("v_pk_add_f32 v[40:41], v[40:41], v[44:45]")
    I("v_add_f32 v42, v40, v41")
    if ts: I("s_memtime s[92:93]")
    I(f"buffer_atomic_swap_x2 v[42:43], v{A0}, s[44:47], 0 offen sc0")
    I("v_add_f32 v52, v40, v41")
    I("s_waitcnt vmcnt(0)")
    if ts: I("s_memtime s[94:95]")
    I("v_cmp_le_i32 vcc, 0, v43")
    I("v_pk_add_f32 v[42:43], v[42:43], v[52:53]")
    I("s_and_saveexec_b64 s[56:57], vcc")
    I("s_cbranch_execz L_fin")
    I("v_add_f32 v43, s54, v43"); I("v_rcp_f32 v44, v43"); I("s_nop 0")
    if nr: I("v_fma_f32 v45, -v43, v44, 1.0"); I("v_fma_f32 v44, v45, v44, v44")
    I("v_mul_f32 v42, v42, v44")
    I("v_cvt_pk_bf16_f32 v42, v42, v42")
    I(f"buffer_store_short v42, v{A1}, s[36:39], 0 offen")
    A("L_fin:")
    if fixed or stamps:
        I("s_mov_b64 exec, -1")
        I("s_cmp_lg_u32 s70, 0"); I("s_cbranch_scc1 L_end")
        if ack: I("s_waitcnt vmcnt(0)")
    if enc >= 0:
        if enc == 65: I("s_memrealtime s[98:99]")
        if enc >= 70: I(f"s_mov_b32 s98, s{88+2*(enc-70)}")
        I("s_waitcnt lgkmcnt(0)")
        I("s_sub_u32 s98, s98, s60")
        for lab, t in (("L_s1", 5500), ("L_s2", 7000)):
            A(lab+":")
            I("s_memrealtime s[68:69]"); I("s_waitcnt lgkmcnt(0)"); I("s_sub_u32 s68, s68, s60")
            I(f"s_cmp_lt_u32 s68, {t}"); I(f"s_cbranch_scc1 {lab}")
            if lab == "L_s1":
                if dg:
                    I("s_mov_b32 s40, s14"); I("s_mov_b32 s41, s15"); I("s_movk_i32 s42, 256"); I("s_mov_b32 s43, 0x20000")
                    mk = sum(1 << x for x in (0,1,2,3,4,5,6,8,10,14,30,46,62))
                    I(f"s_mov_b32 exec_lo, {mk & 0xffffffff:#x}"); I(f"s_mov_b32 exec_hi, {mk >> 32:#x}")
                    I(f"v_mbcnt_lo_u32_b32 v{TLL}, exec_lo, 0"); I(f"v_mbcnt_hi_u32_b32 v{TLL}, exec_hi, v{TLL}"); I(f"v_lshlrev_b32 v{TLL}, 2, v{TLL}")
                    I(f"buffer_atomic_add v{TLV}, v{TLL}, s[40:43], 0 offen offset:4")
                    I("s_mov_b64 exec, -1")
                if em == 'I':
                    I("s_and_b32 s97, s60, 0xfffff"); I("s_getreg_b32 s96, hwreg(HW_REG_XCC_ID, 2, 1)"); I("s_sub_u32 s95, 0, s97"); I("s_cmp_eq_u32 s96, 1"); I("s_cselect_b32 s97, s97, s95")
                    I("s_atomic_add s97, s[14:15], 52")
                if em in 'GI':
                    I("s_and_b32 s99, s60, 0xfffff"); I("s_add_u32 s98, s98, s99"); I("s_atomic_add s99, s[14:15], 60")
                I(("s_atomic_add" if em == 's' else "s_atomic_umax") + " s98, s[14:15], 56"); I("s_waitcnt lgkmcnt(0)")
        I("s_mov_b32 s98, 0"); I("s_atomic_or s98, s[14:15], 56 glc"); I("s_waitcnt lgkmcnt(0)")
        if em in 'GI':
            I("s_mov_b32 s99, 0"); I("s_atomic_or s99, s[14:15], 60 glc"); I("s_waitcnt lgkmcnt(0)"); I("s_lshr_b32 s99, s99, 8"); I("s_sub_u32 s98, s98, s99")
        if em == 'I':
            I("s_mov_b32 s97, 0"); I("s_atomic_or s97, s[14:15], 52 glc"); I("s_waitcnt lgkmcnt(0)"); I("s_ashr_i32 s97, s97, 7"); I("s_add_u32 s98, s97, 200")
        I("s_mul_i32 s98, s98, 10")
        if em == 's': I("s_lshr_b32 s98, s98, 8")
        I(f"s_sub_i32 s98, s98, {eo*1000}"); I("s_max_i32 s98, s98, 0"); I("s_min_i32 s98, s98, 15000")
        I("s_add_u32 s60, s60, s98")
    if fixed:
        A("L_spin:")
        I("s_memrealtime s[68:69]"); I("s_waitcnt lgkmcnt(0)"); I("s_sub_u32 s68, s68, s60")
        I(f"s_cmp_lt_i32 s68, {fixed*100}"); I("s_cbranch_scc1 L_spin")
    if stamps:
        if ts:
            I("s_waitcnt vmcnt(0)"); I("s_memtime s[96:97]")
        I("s_memrealtime s[64:65]")
        I("s_getreg_b32 s66, hwreg(HW_REG_XCC_ID)"); I("s_getreg_b32 s67, hwreg(HW_REG_HW_ID)")
        I("s_waitcnt lgkmcnt(0)")
        I("s_mov_b32 s61, 0"); I("s_sub_u32 s63, s64, s62")
        if wv:
            I(f"ds_read_b128 v[40:43], v{CA} offset:32"); I("s_waitcnt lgkmcnt(0)")
            for r in range(4): I(f"v_readfirstlane_b32 s{88+2*r}, v{40+r}")
            I("s_nop 1")
            for r in (88,90,92,94): I(f"s_sub_u32 s{r}, s64, s{r}")
            I("s_pack_ll_b32_b16 s61, s88, s90"); I("s_pack_ll_b32_b16 s65, s92, s94")
        if pst:
            for r in (88,90,92,94): I(f"s_sub_u32 s{r}, s{r}, s60")
            I("s_pack_ll_b32_b16 s61, s88, s90"); I("s_pack_ll_b32_b16 s65, s92, s94")
        if ts:
            I("s_sub_u32 s96, s96, s94"); I("s_sub_u32 s94, s94, s92"); I("s_sub_u32 s92, s92, s90"); I("s_sub_u32 s90, s90, s88")
            I("s_pack_ll_b32_b16 s61, s90, s92"); I("s_pack_ll_b32_b16 s65, s94, s96")
        for j in range(8): I(f"v_mov_b32 v{20+j}, s{60+j}")
        I("s_add_u32 s44, s16, 0x100000"); I("s_addc_u32 s45, s17, 0"); I("s_mov_b32 s46, 0x100000")
        if tl:
            I("s_lshl_b32 s55, s2, 8"); I("s_add_u32 s55, s55, 0x80000"); I(f"v_lshlrev_b32 v{TLL}, 2, v{TLL}")
            I(f"buffer_store_dword v{TLV}, v{TLL}, s[44:47], s55 offen")
        I("s_lshl_b32 s55, s2, 5"); I("v_mov_b32 v14, 0"); I("s_mov_b64 exec, 1")
        I("buffer_store_dwordx4 v[20:23], v14, s[44:47], s55 offen")
        I("buffer_store_dwordx4 v[24:27], v14, s[44:47], s55 offen offset:16")
    A("L_end:")
    I("s_endpgm")
    if hl == 2: hblock()
    A("L_control:")
    I("s_and_b32 s57, s50, 15"); I("s_lshl_b32 s57, 1, s57")
    I("s_cmp_lg_u32 s19, 0")
    I("s_cbranch_scc1 L_h2")
    I("s_waitcnt vmcnt(0)")
    I("s_atomic_or s57, s[14:15], 0")
    if cnt:
        I("s_memrealtime s[28:29]"); I("s_waitcnt lgkmcnt(0)"); I("s_sub_u32 s28, s28, s60"); I("s_atomic_umax s28, s[14:15], 12")
    A("L_h2:")
    I("s_mov_b32 s26, 0")
    I(f"s_bfe_u32 s52, s2, {(gb << 16) | 3:#x}"); I("s_lshl_b32 s52, s52, 8"); I(f"s_add_u32 s52, s52, {CB:#x}")
    for i in range(4): I(f"s_mov_b32 s{80+i}, {sum(lvn[8*i+j] << (4*j) for j in range(8)):#x}")
    cm = sum(1 << x for x in cpl)
    I(f"s_mov_b32 s84, {cm & 0xffffffff:#x}"); I(f"s_mov_b32 s85, {cm >> 32:#x}")
    A("L_hl:")
    I("s_ff1_i32_b64 s53, s[84:85]")
    I("s_cmp_lt_i32 s53, 0")
    I("s_cbranch_scc1 L_hf")
    I("s_bitset0_b64 s[84:85], s53")
    if lv2:
        l2 = [int(ch, 16) for ch in str(lv2) for _ in range(32//len(str(lv2)))]
        I(f"s_cmp_lt_u32 s53, {sw}"); I("s_cbranch_scc1 L_keep")
        for i in range(4): I(f"s_mov_b32 s{80+i}, {sum(l2[8*i+j] << (4*j) for j in range(8)):#x}")
        A("L_keep:")
    I("s_lshl_b32 s53, s53, 2")
    A("L_hp:")
    I(f"s_sleep {slp}"); I("ds_read_b128 v[4:7], v1 offset:16"); I("s_waitcnt lgkmcnt(0)")
    I("v_add_u32 v4, v4, v5"); I("v_add3_u32 v4, v4, v6, v7"); I("s_nop 0"); I("v_readfirstlane_b32 s55, v4"); I("s_nop 1")
    I("s_cmp_lt_u32 s55, s53"); I("s_cbranch_scc1 L_hp")
    if fe:
        I("s_cmpk_eq_u32 s26, 0xffff"); I("s_cbranch_scc1 L_rank")
        I("s_load_dword s26, s[14:15], 0")
        A("L_f1:")
        I("s_waitcnt lgkmcnt(0)")
        I("s_and_b32 s26, s26, 0xffff"); I("s_cmpk_eq_u32 s26, 0xffff"); I("s_cbranch_scc1 L_rank")
        if cnt: I("s_mov_b32 s27, 1"); I("s_atomic_add s27, s[14:15], 8")
        I("s_sleep 16"); I("s_mov_b32 s26, 0"); I("s_atomic_or s26, s[14:15], 0 glc"); I("s_branch L_f1")
        A("L_rank:")
    I("s_mov_b32 s55, 1"); I("s_atomic_add s55, s[16:17], s52 glc")
    I("s_waitcnt lgkmcnt(0)")
    I(f"s_addk_i32 s52, {cst}")
    I("s_add_u32 s55, s55, 1")
    if gb < 3: I(f"s_lshr_b32 s55, s55, {3-gb}")
    if gb > 3: I(f"s_lshl_b32 s55, s55, {gb-3}"); I(f"s_add_u32 s55, s55, {(1 << (gb-3))//2}")
    I("s_bitcmp1_b32 s55, 4"); I("s_cselect_b64 s[58:59], s[82:83], s[80:81]")
    I("s_lshl_b32 s55, s55, 2"); I("s_lshr_b64 s[58:59], s[58:59], s55"); I("s_and_b32 s58, s58, 15")
    I("v_mov_b32 v2, s58"); I("ds_write_b32 v1, v2")
    I("s_branch L_hl")
    A("L_hf:")
    if not fe:
        I("s_load_dword s20, s[14:15], 0")
        A("L_hf1:")
        I("s_waitcnt lgkmcnt(0)")
        I("s_and_b32 s20, s20, s57")
        I("s_cbranch_scc1 L_hx")
        I("s_sleep 16")
        I("s_atomic_or s20, s[14:15], 0 glc")
        I("s_branch L_hf1")
    A("L_hx:")
    I("s_barrier")
    I("s_endpgm")
    A('.section .rodata,"a"'); A(".p2align 6"); A(f".amdhsa_kernel {NAME}")
    A(f"  .amdhsa_next_free_vgpr {nv}"); A(f"  .amdhsa_next_free_sgpr {100 if (stamps or fixed) else 88}"); A(f"  .amdhsa_accum_offset {(nv+3)//4*4}")
    A("  .amdhsa_group_segment_fixed_size 0"); A("  .amdhsa_kernarg_size 56"); A("  .amdhsa_user_sgpr_count 2")
    A("  .amdhsa_user_sgpr_kernarg_segment_ptr 1"); A("  .amdhsa_system_sgpr_workgroup_id_x 1")
    A("  .amdhsa_float_denorm_mode_32 3")
    A(".end_amdhsa_kernel")
    return "\n".join(L)+"\n"

if __name__ == "__main__":
    d = sys.argv[1]
    os.makedirs(d, exist_ok=True)
    for spec in sys.argv[2:]:
        kv = {}
        for t in spec.split(","):
            if not t or t == "base": continue
            k, v = t.split("=")
            kv[k] = v if k in ('lv','cps','so','tm','em','lv2') else (int(v, 0) if v[0].isdigit() else v.replace("+", " "))
        name = "v10xxxxxxxxxxxx_" + spec.replace("=", "").replace(",", "_")
        open(f"{d}/{name}.s", "w").write(gen(**kv))
```
